```python
import torch

def _softmax(x, axis=-1):
    return torch.softmax(x, dim=axis)
def _gelu(x):
    return torch.nn.functional.gelu(x, approximate="tanh")
def _silu(x):
    return torch.nn.functional.silu(x)
def _sigmoid(x):
    return torch.sigmoid(x)
def _layernorm(x, axis=-1, eps=1e-5):
    m = x.mean(dim=axis, keepdim=True)
    v = x.var(dim=axis, keepdim=True, unbiased=False)
    return (x - m) / torch.sqrt(v + eps)
def _scatter_add(tgt, idx, src, axis=0):
    return tgt.clone().index_add_(axis, idx, src)
def _segment_sum(src, seg, n):
    out = torch.zeros((n,) + src.shape[1:], dtype=src.dtype)
    return out.index_add_(0, seg, src)
def _pad(x, pw):
    flat = tuple(v for pair in reversed(pw) for v in pair)
    return torch.nn.functional.pad(x, flat)

kernel_name = 'concat_heads__mha_block_cached__gqa_block_cached__near_ridge'

def setup_inputs():

    _w = (lambda a: (lambda t: t.to(torch.bfloat16) if t.is_floating_point() else t)(torch.as_tensor(a)))
    def _A_setup():
        B, Sq, D = 16, 48, 1024
        H, Sk, Dh = 32, 48, 128
        return {
            "x": _w((lambda *s: torch.randn(*s, dtype=torch.bfloat16) * 0.8)(B, Sq, D)),
            "k_cache": _w((lambda *s: torch.randn(*s, dtype=torch.bfloat16) * 0.8)(B, H, Sk, Dh)),
            "v_cache": _w((lambda *s: torch.randn(*s, dtype=torch.bfloat16) * 0.05)(B, H, Sk, Dh)),
            "wq": _w((lambda *s: torch.randn(*s, dtype=torch.bfloat16) * 0.8)(D, H * Dh) * (D ** -0.5)),
            "wo": _w((lambda *s: torch.randn(*s, dtype=torch.bfloat16) * 0.05)(H * Dh, D) * ((H * Dh) ** -0.5)),
        }
    _A_in = _A_setup()

    def _B_setup():
        B, Sq, D = 16, 48, 1024
        Hq, Hkv, Sk, Dh = 32, 32, 48, 128
        assert Hq % Hkv == 0, (Hq, Hkv)
        return {
            "x": _w((lambda *s: torch.randn(*s, dtype=torch.bfloat16) * 0.8)(B, Sq, D)),
            "k_cache": _w((lambda *s: torch.randn(*s, dtype=torch.bfloat16) * 0.8)(B, Hkv, Sk, Dh)),
            "v_cache": _w((lambda *s: torch.randn(*s, dtype=torch.bfloat16) * 0.05)(B, Hkv, Sk, Dh)),
            "wq": _w((lambda *s: torch.randn(*s, dtype=torch.bfloat16) * 0.8)(D, Hq * Dh) * (D ** -0.5)),
            "wo": _w((lambda *s: torch.randn(*s, dtype=torch.bfloat16) * 0.05)(Hq * Dh, D) * ((Hq * Dh) ** -0.5)),
        }
    _B_in = _B_setup()

    return {
        "A_x": _A_in["x"],
        "A_k_cache": _A_in["k_cache"],
        "A_v_cache": _A_in["v_cache"],
        "A_wq": _A_in["wq"],
        "A_wo": _A_in["wo"],
        "B_x": _B_in["x"],
        "B_k_cache": _B_in["k_cache"],
        "B_v_cache": _B_in["v_cache"],
        "B_wq": _B_in["wq"],
        "B_wo": _B_in["wo"],
    }

def reference(A_x, A_k_cache, A_v_cache, A_wq, A_wo, B_x, B_k_cache, B_v_cache, B_wq, B_wo):
    def _A_ref(x, k_cache, v_cache, wq, wo):
        B, Sq, D = x.shape
        H, Dh = 32, 128
        q = (lambda x, *d: x.permute(*d))((x @ wq).reshape(B, Sq, H, Dh), 0, 2, 1, 3)
        scores = torch.einsum("bhqd,bhkd->bhqk", q, k_cache) * (Dh ** -0.5)
        p = _softmax(scores, axis=-1)
        o = torch.einsum("bhqk,bhkd->bhqd", p, v_cache)
        return (lambda x, *d: x.permute(*d))(o, 0, 2, 1, 3).reshape(B, Sq, H * Dh) @ wo

    def _B_ref(x, k_cache, v_cache, wq, wo):
        B, Sq, D = x.shape
        Hq, Dh = 32, 128
        Hkv = k_cache.shape[1]
        rep = Hq // Hkv
        q = (lambda x, *d: x.permute(*d))((x @ wq).reshape(B, Sq, Hq, Dh), 0, 2, 1, 3)
        k = (lambda x, n, axis: torch.repeat_interleave(x, n, dim=axis))(k_cache, rep, axis=1)
        v = (lambda x, n, axis: torch.repeat_interleave(x, n, dim=axis))(v_cache, rep, axis=1)
        scores = torch.einsum("bhqd,bhkd->bhqk", q, k) * (Dh ** -0.5)
        p = _softmax(scores, axis=-1)
        o = torch.einsum("bhqk,bhkd->bhqd", p, v)
        return (lambda x, *d: x.permute(*d))(o, 0, 2, 1, 3).reshape(B, Sq, Hq * Dh) @ wo

    a = _A_ref(A_x, A_k_cache, A_v_cache, A_wq, A_wo)
    b = _B_ref(B_x, B_k_cache, B_v_cache, B_wq, B_wo)
    return torch.concatenate([a, b], axis=-1)
```

```python
import re

_REG = re.compile(r'(?<![\w.])(-?)(?:abs\()?([vas])(?:(\d+)|\[(\d+):(\d+)\])\)?')

def regs_of(tok):
    tok = tok.strip()
    out = []
    if tok in ('vcc',): return [('s', 106), ('s', 107)]
    if tok == 'vcc_lo': return [('s', 106)]
    if tok == 'vcc_hi': return [('s', 107)]
    if tok == 'exec': return [('s', 126), ('s', 127)]
    if tok == 'exec_lo': return [('s', 126)]
    if tok == 'exec_hi': return [('s', 127)]
    if tok == 'm0': return [('s', 124)]
    m = re.fullmatch(r'-?(?:abs\()?([vas])(?:(\d+)|\[(\d+):(\d+)\])\)?', tok)
    if not m: return []
    f = m.group(1)
    if m.group(2) is not None: return [(f, int(m.group(2)))]
    return [(f, i) for i in range(int(m.group(3)), int(m.group(4)) + 1)]

TRANS = ('v_exp_f32', 'v_log_f32', 'v_rcp_f32', 'v_rsq_f32', 'v_sqrt_f32', 'v_sin_f32', 'v_cos_f32', 'v_rcp_iflag_f32')

class Inst:
    __slots__ = ('text', 'op', 'kind', 'defs', 'uses', 'tag', 'waitfor', 'srcC', 'srcAB', 'passes', 'note', 'wide_store')
    def __init__(self, text, tag=None):
        self.text = text; self.tag = tag; self.waitfor = None; self.note = None
        self.srcC = []; self.srcAB = []; self.passes = 0; self.wide_store = False
        t = text.split(';')[0].strip()
        if t.endswith(':') or t == '' or t.startswith('.'):
            self.op = ''; self.kind = 'label' if t.endswith(':') else 'dir'; self.defs = set(); self.uses = set(); return
        parts = t.split(None, 1)
        op = parts[0]; self.op = op
        rest = parts[1] if len(parts) > 1 else ''
        ops = [o.strip() for o in rest.split(',')] if rest else []
        mods = []
        if ops:
            last = ops[-1].split()
            if last:
                ops[-1] = last[0]; mods = last[1:]
        R = [regs_of(o) for o in ops]
        defs = []; uses = []
        base = re.sub(r'_e(32|64)$', '', op)
        if op.startswith('v_mfma'):
            self.kind = 'mfma'
            defs = R[0]; self.srcAB = R[1] + R[2]; self.srcC = R[3]; uses = R[1] + R[2] + R[3]
            self.passes = 8 if ('32x32' in op) else 4
        elif op.startswith('buffer_load') :
            if 'lds' in mods:
                self.kind = 'dma'; uses = sum(R, []) + [('s', 124)]
            else:
                self.kind = 'vload'; defs = R[0]; uses = sum(R[1:], [])
        elif op.startswith('global_load'):
            self.kind = 'vload'; defs = R[0]; uses = sum(R[1:], [])
        elif op.startswith('buffer_store') or op.startswith('global_store'):
            self.kind = 'vstore'; uses = sum(R, [])
            self.wide_store = ('x3' in op or 'x4' in op)
            if self.wide_store:
                self.srcC = R[0] if op.startswith('buffer') else R[1]
        elif op.startswith('buffer_atomic') or op.startswith('global_atomic'):
            self.kind = 'vatomic'; uses = sum(R, [])
            if 'sc0' in mods: defs = R[0]
        elif op.startswith('buffer_wbl2') or op.startswith('buffer_inv'):
            self.kind = 'vstore'
        elif op.startswith('ds_read') :
            self.kind = 'dsread'; defs = R[0]; uses = sum(R[1:], [])
        elif op.startswith('ds_write'):
            self.kind = 'dswrite'; uses = sum(R, [])
        elif op.startswith('ds_bpermute') or op.startswith('ds_permute') or op.startswith('ds_swizzle'):
            self.kind = 'dsread'; defs = R[0]; uses = sum(R[1:], [])
        elif op.startswith('s_load') :
            self.kind = 'smem'; defs = R[0]; uses = sum(R[1:], [])
        elif op in ('s_memtime', 's_memrealtime'):
            self.kind = 'smem'; defs = R[0]
        elif op == 's_waitcnt': self.kind = 'wait'
        elif op == 's_barrier': self.kind = 'barrier'
        elif op == 's_nop': self.kind = 'nop'
        elif op in ('s_endpgm', 's_branch') or op.startswith('s_cbranch'):
            self.kind = 'branch'
            if 'vcc' in op: uses = [('s', 106), ('s', 107)]
            if 'exec' in op: uses = [('s', 126), ('s', 127)]
        elif op in ('s_setprio', 's_sleep', 's_sethalt'): self.kind = 'salu'
        elif op.startswith('s_cmp') or op.startswith('s_bitcmp'):
            self.kind = 'salu'; uses = sum(R, [])
        elif op.startswith('s_'):
            self.kind = 'salu'; defs = R[0]; uses = sum(R[1:], [])
            if op.startswith('s_getreg'): uses = []
            if op in ('s_addk_i32', 's_mulk_i32'): uses = uses + R[0]
            if 'saveexec' in op: defs = defs + [('s', 126), ('s', 127)]; uses = uses + [('s', 126), ('s', 127)]
        elif op.startswith('v_'):
            self.kind = 'trans' if base in TRANS else 'valu'
            if op.startswith('v_cmp'):
                defs = R[0]; uses = sum(R[1:], [])
            elif op.startswith('v_permlane16_swap') or op.startswith('v_permlane32_swap'):
                defs = R[0] + R[1]; uses = R[0] + R[1]; self.kind = 'permlane'
            elif base in ('v_add_co_u32', 'v_sub_co_u32', 'v_addc_co_u32', 'v_subb_co_u32'):
                defs = R[0] + R[1]; uses = sum(R[2:], [])
            elif base in ('v_readfirstlane_b32', 'v_readlane_b32'):
                defs = R[0]; uses = sum(R[1:], []); self.kind = 'readlane'
            elif base == 'v_writelane_b32':
                defs = R[0]; uses = sum(R, [])
            else:
                defs = R[0]; uses = sum(R[1:], [])
                if base in ('v_fmac_f32', 'v_pk_fmac_f16', 'v_dot2c_f32_bf16'): uses = uses + R[0]
                if base == 'v_cndmask_b32' and len(ops) == 3: uses = uses + [('s', 106), ('s', 107)]
            if any(m.startswith('row_') or m.startswith('quad_perm') or m.startswith('wave_') for m in mods):
                self.kind = 'dpp'; uses = uses + R[0]
        else:
            raise ValueError('unknown op: ' + text)
        self.defs = set(defs); self.uses = set(uses)
    def __repr__(self): return self.text

VM_KINDS = ('vload', 'vstore', 'vatomic', 'dma')
DS_KINDS = ('dsread', 'dswrite')
VALU_KINDS = ('valu', 'trans', 'permlane', 'readlane', 'dpp')

class Prog:
    def __init__(self): self.insts = []
    def __call__(self, text, tag=None):
        for line in text.split('\n'):
            line = line.strip()
            if not line: continue
            i = Inst(line, tag); self.insts.append(i)
        return self.insts[-1]
    def add(self, inst): self.insts.append(inst); return inst
    def extend(self, lst):
        for i in lst: self.insts.append(i)
    def wait(self, vm=None, lgkm=None):
        i = Inst('s_waitcnt'); i.waitfor = (vm, lgkm); self.insts.append(i); return i

def mk(text, tag=None): return Inst(text, tag)
def mkwait(vm=None, lgkm=None, soft=False):
    i = Inst('s_waitcnt'); i.waitfor = (vm, lgkm)
    if soft: i.note = 'soft'
    return i

def resolve_waits(insts, verbose=False):
    out = []
    vm = []
    lg = []
    def emit_wait(nv, nl):
        nonlocal vm, lg
        s = []
        if nv is not None and nv < len(vm):
            assert nv <= 63
            s.append(f'vmcnt({nv})'); vm = vm[len(vm)-nv:] if nv else []
        if nl is not None and nl < len(lg):
            if any(x.kind == 'smem' for x in lg): nl = 0
            nl2 = min(nl, 15)
            s.append(f'lgkmcnt({nl2})'); lg = lg[len(lg)-nl2:] if nl2 else []
        if s:
            out.append(Inst('s_waitcnt ' + ' '.join(s)))
    saved = None
    for ins in insts:
        if ins.text == '.variant_begin':
            if saved is None: saved = (list(vm), list(lg))
            else: vm, lg = list(saved[0]), list(saved[1])
            out.append(ins); continue
        if ins.kind == 'wait':
            if ins.waitfor is None and ins.note == 'slowpath':
                out.append(ins); continue
            if ins.waitfor is None:
                m = re.search(r'vmcnt\((\d+)\)', ins.text); l = re.search(r'lgkmcnt\((\d+)\)', ins.text)
                if m:
                    n = int(m.group(1)); vm = vm[len(vm)-n:] if n and n < len(vm) else (vm if n >= len(vm) else [])
                if l:
                    n = int(l.group(1)); lg = lg[len(lg)-n:] if n and n < len(lg) else (lg if n >= len(lg) else [])
                out.append(ins); continue
            tv, tl = ins.waitfor
            nv = nl = None
            if tv is not None:
                if tv == 0: nv = 0
                else:
                    tags = tv if isinstance(tv, (set, list, tuple)) else (tv,)
                    idx = [k for k, x in enumerate(vm) if x.tag in tags]
                    if idx: nv = len(vm) - 1 - idx[-1]
            if tl is not None:
                if tl == 0: nl = 0
                else:
                    tags = tl if isinstance(tl, (set, list, tuple)) else (tl,)
                    idx = [k for k, x in enumerate(lg) if x.tag in tags]
                    if idx: nl = len(lg) - 1 - idx[-1]
            emit_wait(nv, nl)
            continue
        touched = ins.uses | ins.defs
        nv = nl = None
        if touched:
            for k in range(len(vm)-1, -1, -1):
                x = vm[k]
                if x.defs & touched:
                    if ins.kind == 'vload' and not (x.defs & ins.uses): continue
                    nv = len(vm) - 1 - k; break
            for k in range(len(lg)-1, -1, -1):
                x = lg[k]
                if x.defs & touched:
                    if ins.kind == 'dsread' and x.kind == 'dsread' and not (x.defs & ins.uses): continue
                    nl = len(lg) - 1 - k; break
        if nv is not None or nl is not None: emit_wait(nv, nl)
        if ins.note == 'slowpath':
            pass
        elif ins.kind in VM_KINDS:
            if len(vm) >= 63:
                emit_wait(62, None)
            vm.append(ins)
        elif ins.kind in DS_KINDS or ins.kind == 'smem':
            lg.append(ins)
        out.append(ins)
    return out

def states(ins):
    if ins.kind in ('label', 'dir'): return 0
    if ins.kind == 'nop': return int(ins.text.split()[1]) + 1
    return 1

def is_sgpr(r): return r[0] == 's'

def need(prod, cons):
    n = 0
    pk, ck = prod.kind, cons.kind
    pd = prod.defs
    if pk in VALU_KINDS:
        vd = {r for r in pd if not is_sgpr(r)}; sd = {r for r in pd if is_sgpr(r)}
        if vd:
            if ck == 'mfma' and (vd & cons.uses): n = max(n, 2)
            if ck == 'readlane' and (vd & cons.uses): n = max(n, 1)
            if ck in ('permlane', 'dpp') and (vd & cons.uses): n = max(n, 2)
            if pk == 'trans' and ck in VALU_KINDS and ck != 'trans' and (vd & cons.uses): n = max(n, 1)
            if pk == 'trans' and ck == 'trans' and (vd & cons.uses): n = max(n, 1)
        if sd:
            if ck in VM_KINDS and (sd & cons.uses): n = max(n, 5)
            if ck in VALU_KINDS and (sd & cons.uses):
                n = max(n, 4 if (ck == 'readlane' or cons.op.startswith('v_writelane')) else 2)
            if ck in ('salu', 'branch') and (sd & cons.uses): n = max(n, 4)
            if (('s', 126) in sd or ('s', 127) in sd) and ck in ('mfma', 'dpp', 'permlane', 'readlane'): n = max(n, 5)
    if pk == 'salu':
        if ('s', 124) in pd and ck == 'dma': n = max(n, 1)
        if ('s', 124) in pd and cons.op.startswith('v_writelane'): n = max(n, 4)
    if pk == 'mfma':
        P = prod.passes
        rd = {4: 8, 8: 12}[P]; ov = {4: 6, 8: 10}[P]; war = {4: 3, 8: 7}[P]
        if ck == 'mfma':
            if pd & set(cons.srcAB): n = max(n, rd)
            if pd & set(cons.srcC):
                exact = (sorted(pd) == sorted(cons.srcC)) and cons.passes == P
                if not exact: n = max(n, ov)
            elif pd & cons.defs:
                n = max(n, ov)
        elif ck in VALU_KINDS or ck in VM_KINDS or ck in DS_KINDS:
            if pd & (cons.uses | cons.defs): n = max(n, rd)
        if ck in VALU_KINDS and (set(prod.srcC) & cons.defs): n = max(n, war)
    if prod.wide_store and (set(prod.srcC) & cons.defs):
        if ck in VALU_KINDS or ck == 'mfma': n = max(n, 2)
        else: n = max(n, 1)
    return n

def fix_hazards(insts, window=24):
    out = []
    nops = 0
    for ins in insts:
        if ins.kind in ('label', 'dir'):
            out.append(ins); continue
        req = 0
        dist = 0
        k = len(out) - 1
        while k >= 0 and dist < window:
            p = out[k]
            if p.kind not in ('label', 'dir', 'nop', 'wait', 'barrier'):
                r = need(p, ins)
                if r > dist: req = max(req, r - dist)
            dist += states(p)
            k -= 1
        while req > 0:
            c = min(req, 16)
            out.append(Inst(f's_nop {c-1}')); nops += c; req -= c
        out.append(ins)
    return out, nops

def finalize(prog):
    a = resolve_waits(prog.insts)
    b, nops = fix_hazards(a)
    return b, nops

def text_of(insts):
    return '\n'.join(('' if i.kind in ('label', 'dir') else '  ') + i.text for i in insts)

def interleave(main, fillers, per_gap=2, start=0, end=None):
    out = []
    fi = 0
    n = len(main)
    end = n if end is None else end
    for k, m in enumerate(main):
        out.append(m)
        if k >= start:
            c = 0
            while fi < len(fillers) and c < per_gap:
                out.append(fillers[fi]); fi += 1; c += 1
    out.extend(fillers[fi:])
    return out

def spread(main, fillers, start=0, end=None, maxper=2):
    n = len(main); end = n if end is None else end
    gaps = end - start
    out = []; fi = 0; F = len(fillers)
    for k, m in enumerate(main):
        out.append(m)
        if start <= k < end:
            want = ((k - start + 1) * F + gaps - 1) // gaps
            c = 0
            while fi < want and fi < F and c < maxper:
                out.append(fillers[fi]); fi += 1; c += 1
    out.extend(fillers[fi:])
    return out

def _cost(i):
    if i.kind == 'mfma': return 8
    if i.kind == 'trans': return 8
    return 4
def _lat(p, c):
    if p.kind == 'mfma':
        if c.kind == 'mfma' and (p.defs & set(c.srcC)) and not (p.defs & set(c.srcAB)): return 16
        return 40
    if p.kind == 'trans': return 16
    if p.kind in ('valu', 'permlane', 'readlane', 'dpp'):
        if c.kind == 'mfma': return 12
        if c.kind in ('permlane', 'dpp'): return 12
        return 4 if p.kind != 'permlane' else 8
    if p.kind == 'dsread': return 140
    if p.kind == 'vload': return 1500
    return 4

def list_schedule(insts, release=None, sink_lat=None, verbose=False, edges=None, mfma_first=False):
    n = len(insts)
    release = release or {}
    preds = [[] for _ in range(n)]; succs = [[] for _ in range(n)]
    last_def = {}; readers = {}
    SCC = ('scc', 0)
    last_vm = None
    def add(a, b, lat, hz):
        preds[b].append((a, lat, hz)); succs[a].append((b, lat, hz))
    for k, i in enumerate(insts):
        uses = set(i.uses); defs = set(i.defs)
        for r in uses:
            if r in last_def: add(last_def[r], k, _lat(insts[last_def[r]], i), need(insts[last_def[r]], i))
        for r in defs:
            if r in last_def and r not in uses:
                p = insts[last_def[r]]
                add(last_def[r], k, 4 if p.kind != 'mfma' else 40, need(p, i))
            for q in readers.get(r, []):
                if q != k: add(q, k, 4, need(insts[q], i))
        for r in uses: readers.setdefault(r, []).append(k)
        for r in defs:
            last_def[r] = k; readers[r] = [k] if r in uses else []
        if i.kind in ('wait', 'barrier') and not getattr(i, 'note', None) == 'soft':
            for j in range(k): add(j, k, 0, 0)
        for j in range(k-1, -1, -1):
            if insts[j].kind in ('wait', 'barrier') and not insts[j].note == 'soft':
                add(j, k, 0, 0); break
    idx = {id(x): k for k, x in enumerate(insts)}
    for (a, b, lat) in (edges or []):
        add(idx[id(a)], idx[id(b)], lat, 0)
    h = [0]*n
    for k in range(n-1, -1, -1):
        b = _cost(insts[k]) + (sink_lat(insts[k]) if sink_lat else 0)
        for (s, lat, hz) in succs[k]: b = max(b, lat + h[s])
        h[k] = b
    done = [False]*n; tiss = [0]*n; nidx = [0]*n
    npred = [len(p) for p in preds]
    ready = [k for k in range(n) if npred[k] == 0]
    order = []; t = 0; mf_free = 0; cnt = 0
    while ready:
        best = None; bestkey = None
        for k in ready:
            i = insts[k]
            est = max([tiss[a] + lat for (a, lat, hz) in preds[k]] + [0])
            hzst = max([nidx[a] + hz + 1 - cnt for (a, lat, hz) in preds[k]] + [0])
            est = max(est, t + 4*hzst)
            if i.kind == 'mfma': est = max(est, mf_free)
            rel = release.get(k)
            if rel is not None:
                if rel > t and len(ready) > 1 and any(release.get(x) is None or release.get(x) <= t for x in ready if x != k):
                    continue
                key = (0 if est <= t else 1, -10**6 + rel, 0) if rel <= t else (2, rel, 0)
            else:
                stall = max(0, est - t)
                if mfma_first and i.kind == 'mfma' and stall == 0: key = (-1, -h[k], 0)
                else: key = (0 if stall == 0 else 1, stall if stall else -h[k], -h[k])
            if bestkey is None or key < bestkey: best, bestkey = k, key
        k = best; i = insts[k]
        est = max([tiss[a] + lat for (a, lat, hz) in preds[k]] + [t])
        if i.kind == 'mfma': est = max(est, mf_free)
        t = max(t, est)
        tiss[k] = t; nidx[k] = cnt; cnt += 1
        if i.kind == 'mfma': mf_free = t + 16
        t += _cost(i)
        order.append(i); ready.remove(k); done[k] = True
        for (s, lat, hz) in succs[k]:
            npred[s] -= 1
            if npred[s] == 0 and s not in ready and not done[s]: ready.append(s)
    assert len(order) == n
    if verbose: print("schedule estimate", t, "cycles for", n, "instructions")
    return order

def verify_counters(insts, take_atomic, take_slow):
    vm = []; lg = []; bad = []; saved = None
    for n, ins in enumerate(insts):
        if ins.text == '.variant_begin':
            if saved is None: saved = (list(vm), list(lg))
            else: vm, lg = list(saved[0]), list(saved[1])
            continue
        if ins.kind in ('label', 'dir'): continue
        if ins.note == 'slowpath':
            if ins.kind == 'vatomic':
                if take_atomic: vm.append(ins)
                continue
            if not take_slow: continue
        if ins.kind == 'wait':
            m = re.search(r'vmcnt\((\d+)\)', ins.text); l = re.search(r'lgkmcnt\((\d+)\)', ins.text)
            if m:
                k = int(m.group(1)); vm = vm[len(vm)-k:] if 0 < k < len(vm) else ([] if k == 0 else vm)
            if l:
                k = int(l.group(1))
                if any(x.kind == 'smem' for x in lg) and k != 0: bad.append((n, 'counted lgkm wait with smem pending'))
                lg = lg[len(lg)-k:] if 0 < k < len(lg) else ([] if k == 0 else lg)
            continue
        if len(vm) > 63: bad.append((n, 'more than 63 vm'))
        while len(lg) > 15 and not any(x.kind == 'smem' for x in lg): lg.pop(0)
        touched = ins.uses | ins.defs
        for x in vm:
            if x.defs & touched and not (ins.kind == 'vload' and not (x.defs & ins.uses)):
                bad.append((n, f'register pending from {x.text} used by {ins.text}'))
        for x in lg:
            if x.defs & touched and not (ins.kind == 'dsread' and x.kind == 'dsread' and not (x.defs & ins.uses)):
                bad.append((n, f'register pending from {x.text} used by {ins.text}'))
        t = ins.tag or ''
        if t.startswith('tr') and ins.kind == 'dsread':
            l_ = t[2:]
            if any(x.tag == 'wo' + l_ for x in vm): bad.append((n, f'{t} before its DMA landed'))
        if t.startswith('wo') and ins.kind == 'dma':
            l_ = int(t[2:])
            if any(x.tag == f'tr{l_-10}' for x in lg): bad.append((n, f'{t} while tr{l_-10} is pending'))
        if t.startswith('fr') and ins.kind == 'dsread':
            if any(x.tag == 'dma' + t[2:] for x in vm): bad.append((n, f'{t} before dma landed'))
        if t.startswith('dma') and ins.kind == 'dma':
            s_ = int(t[3:])
            if any(x.tag == f'fr{s_-3}' for x in lg): bad.append((n, f'{t} while fr{s_-3} pending'))
        if ins.kind == 'vatomic' or (ins.kind == 'barrier' and ins.note == 'publish'):
            if any(x.tag == 'ost' for x in vm): bad.append((n, 'publish with O stores pending'))
        if ins.kind == 'barrier' and lg and any(x.kind in ('dsread', 'dswrite') for x in lg) and ins.note != 'nolds':
            bad.append((n, 'barrier with LDS operations pending', [x.text for x in lg]))
        if ins.kind in VM_KINDS: vm.append(ins)
        elif ins.kind in DS_KINDS or ins.kind == 'smem': lg.append(ins)
    return bad
```

```python
import sys, math, re, struct
from asmgen import *

KNAME = "concat_heads__mha_block_cached__gqa_block_cached__near_ridge_kernel"
STAMP_OFF = 16 << 20

sX, sWQ, sK, sV, sWS, sWO, sOUT, sDBG = 32, 36, 40, 44, 48, 52, 56, 60
S_TO, S_TW = 32, 40
s_br, s_h, s_b, s_bg, s_hg, s_idx = 26, 27, 28, 29, 30, 31
s_xoff, s_woff, s_kvoff, s_ooff, s_mx, s_mw = 64, 65, 66, 67, 68, 69
s_t0 = 70
s_kb = 74; s_m2 = 75; s_cs = 76
s_st, s_xb, s_wb = 77, 78, 79
s_pm2 = 75
s_wcur = 15; s_outoff = 78; s_oo = 8; s_wo2 = 9
S_SLOT = [40, 41, 42, 43, 66, 74, 17, 10, 11, 16]
s_rt, s_ct = 18, 19
s_sig, s_poll = 100, 101
S_STAMP = 80

def srd(n): return f"s[{n}:{n+3}]"
def vr(n, c=1): return f"v{n}" if c == 1 else f"v[{n}:{n+c-1}]"
def ar(n, c=1): return f"a{n}" if c == 1 else f"a[{n}:{n+c-1}]"
def f32bits(x): return hex(struct.unpack('<I', struct.pack('<f', x))[0])

class Opt:
    def __init__(self, **kw):
        self.nt_x = ""; self.nt_w = ""; self.nt_kv = ""; self.nt_wo = ""; self.o_sc = "sc1"; self.o_ld = "sc1"; self.out_sc = ""
        self.stamps = False; self.clk = 's_memrealtime'; self.stage_stamps = False
        self.rot = False; self.rb = 8; self.rot_bg = 2; self.rot_h = 1; self.kvmode = 'spread'
        self.p2map = 'A'; self.p2rot_c = 1; self.p2rot_r = 2
        self.n_attn = 10
        self.attn_span = 2600
        self.DO = 3; self.n_pre = 10; self.upto = 9; self.vrel = 100; self.vstep = 150; self.vblocks = None; self.delay_sets = None; self.oblk = 32*24576; self.pro = 0; self.pro_stamps = False; self.w2d = 0; self.xor = 0; self.drain = True; self.perm_ws = False; self.hmap = 0; self.cmap = 0; self.touch = False; self.pk = False; self.mfma_first = False; self.nreg = 16; self.tail2 = False; self.stag = 0; self.endwait = True; self.wperm = None; self.perm = None; self.phi = (1, 3); self.R = 8; self.n_mid = 0; self.n_early = 5; self.tr_attn = 0; self.poll_at = 16
        self.verbose = False
        self.__dict__.update(kw)

def stamp(P, o, i, stage=False):
    if o.stamps and (stage or not o.stage_stamps or i <= 1): P(f"{o.clk} s[{S_STAMP+2*i}:{S_STAMP+2*i+1}]")

ACC = 8
def acc(t, u): return ACC + (t*3 + u)*4
V_X, V_W, V_TA, V_XR, V_L16 = 104, 110, 114, 122, 124
V_KW, V_VW, V_KR, V_VR = 125, 126, 127, 128
V2_WD, V2_TA = 130, 134
QB = 140
def qb(u, p): return QB + (u*4 + p)*4
SA = 188
def sa(kt, u): return SA + (u*3 + kt)*4
PB = 224
def pb(u): return PB + u*6
V_M = 242
A_KV = 0
def kf(kt, p): return A_KV + (kt*4 + p)*4
def vf(t): return 184 + t*6
A_FA, A_FB = 96, 160
def fa(buf, t): return A_FA + buf*32 + t*4
def fb(buf, u): return A_FB + buf*12 + u*4
LDS_W, LDS_X = 0, 49152
K_STRIDE, V_STRIDE = 272, 288
KV_BASE = [122880 + w*4608 for w in range(4)]
def acc2(tn, f): return 8 + (f*4 + tn)*4
V2_O = 140
V2_RW, V2_RR, V2_OUT = 104, 105, 107
V2_R = 132
_Q1 = list(range(48, 184, 4)) + list(range(232, 256, 4))
_Q2 = list(range(0, 48, 4)) + list(range(184, 232, 4))
NREG = [16]; ARCH0 = [188]
def woq(l, tn):
    if l < 10: return ('a', _Q1[4*l + tn])
    if l < 16: return ('a', _Q2[4*(l-10) + tn])
    if l < NREG[0]: return ('v', ARCH0[0] + 16*(l-16) + 4*tn)
    return ('a', _Q1[4*(l & 1) + tn])
def rq(q, off, n): return f"{q[0]}[{q[1]+off}:{q[1]+off+n-1}]"
NSLOT = 10
RED_STRIDE = 272; RED_WAVE = 96*272

def prologue(P, o):
    P("s_cmp_ge_u32 s2, 0x100")
    P("s_cbranch_scc1 L_exit")
    if o.xor: P(f"s_xor_b32 s2, s2, {o.xor}")
    stamp(P, o, 0)
    P("v_lshrrev_b32 v1, 6, v0")
    P("s_and_b32 s4, s2, 7")
    P("v_readfirstlane_b32 s3, v1")
    P(f"s_lshr_b32 s{s_br}, s4, 2")
    P(f"s_and_b32 s{s_hg}, s4, 3")
    P(f"s_lshr_b32 s{s_idx}, s2, 3")
    P(f"s_mul_i32 s5, s{s_br}, 40")
    P("s_add_u32 s6, s0, s5")
    P("s_addc_u32 s7, s1, 0")
    P("s_load_dwordx8 s[8:15], s[6:7], 0")
    P("s_load_dwordx2 s[16:17], s[6:7], 32")
    P("s_load_dwordx4 s[20:23], s[0:1], 80")
    P("s_load_dwordx2 s[24:25], s[0:1], 96")
    P("v_and_b32 v0, 63, v0")

def build_srds(P):
    P.wait(lgkm=0)
    def one(n, lo, size):
        P(f"s_mov_b32 s{n}, s{lo}"); P(f"s_and_b32 s{n+1}, s{lo+1}, 0xffff")
        P(f"s_mov_b32 s{n+2}, {size}"); P(f"s_mov_b32 s{n+3}, 0x20000")
    one(sWQ, 14, 1024*4096*2); one(sX, 8, 16*48*1024*2)

def build_srds2(P):
    def one(n, lo, size):
        P(f"s_mov_b32 s{n}, s{lo}"); P(f"s_and_b32 s{n+1}, s{lo+1}, 0xffff")
        P(f"s_mov_b32 s{n+2}, {size}"); P(f"s_mov_b32 s{n+3}, 0x20000")
    one(sK, 10, 16*32*48*128*2); one(sV, 12, 16*32*48*128*2)
    one(sWO, 16, 4096*1024*2); one(sOUT, 20, 16*48*2048*2)
    one(sDBG, 22, 256); one(sWS, 24, 268435456)

def p1_scalar(P, o):
    P(f"s_and_b32 s{s_bg}, s{s_idx}, 3")
    P(f"s_lshr_b32 s4, s{s_idx}, 2")
    if o.hmap == 0:
        P(f"s_lshl_b32 s{s_h}, s{s_hg}, 3")
        P(f"s_add_u32 s{s_h}, s{s_h}, s4")
    else:
        P(f"s_lshl_b32 s{s_h}, s4, 2")
        P(f"s_add_u32 s{s_h}, s{s_h}, s{s_hg}")
    P(f"s_lshl_b32 s{s_b}, s{s_bg}, 2")
    P(f"s_add_u32 s{s_b}, s{s_b}, s3")
    P(f"s_mul_i32 s{s_xoff}, s{s_b}, {48*2048}")
    P(f"s_lshl_b32 s4, s3, 17")
    P(f"s_lshl_b32 s{s_woff}, s{s_h}, 8")
    P(f"s_add_u32 s{s_woff}, s{s_woff}, s4")
    P(f"s_mul_i32 s{s_mx}, s3, 6144"); P(f"s_add_u32 s{s_mx}, s{s_mx}, {LDS_X}")
    P(f"s_lshl_b32 s{s_mw}, s3, 12")
    if o.perm is not None:
        P(f"s_mul_i32 s4, s{s_bg}, {o.phi[0]}"); P(f"s_lshr_b32 s5, s{s_idx}, 2"); P(f"s_mul_i32 s5, s5, {o.phi[1]}")
        P("s_add_u32 s4, s4, s5"); P("s_and_b32 s4, s4, 3")
        if o.perm_ws:
            P.wait(lgkm=0)
            P("s_lshl_b32 s4, s4, 3"); P(f"s_add_u32 s4, s4, {20 << 20}")
            P("s_add_u32 s6, s24, s4"); P("s_addc_u32 s7, s25, 0")
            P("s_load_dwordx2 s[18:19], s[6:7], 0")
            P.wait(lgkm=0)
            P(f"s_mov_b32 s{s_st}, s18"); P(f"s_mov_b32 s{s_pm2}, s19")
        else:
            words = [sum(k << (4*i) for i, k in enumerate(p)) for p in o.perm]
            P(f"s_mov_b32 s{s_st}, {words[0] & 0xffffffff}"); P(f"s_mov_b32 s{s_pm2}, {words[0] >> 32}")
            for ph in (1, 2, 3):
                P(f"s_cmp_eq_u32 s4, {ph}")
                P(f"s_cselect_b32 s{s_st}, {words[ph] & 0xffffffff}, s{s_st}"); P(f"s_cselect_b32 s{s_pm2}, {words[ph] >> 32}, s{s_pm2}")
        P(f"s_mov_b32 s{s_xb}, s{s_xoff}"); P(f"s_mov_b32 s{s_wb}, s{s_woff}")
        P(f"s_and_b32 s4, s{s_st}, 15")
        P(f"s_lshl_b32 s5, s4, 7"); P(f"s_add_u32 s{s_xoff}, s{s_xb}, s5")
        P(f"s_lshl_b32 s4, s4, 19"); P(f"s_add_u32 s{s_woff}, s{s_wb}, s4")
    elif o.rot:
        P(f"s_mul_i32 s4, s{s_bg}, {o.rot_bg}"); P(f"s_lshr_b32 s5, s{s_idx}, 2"); P(f"s_mul_i32 s5, s5, {o.rot_h}")
        P(f"s_add_u32 s{s_st}, s4, s5"); P(f"s_and_b32 s{s_st}, s{s_st}, {o.rb-1}")
        P(f"s_mov_b32 s{s_xb}, s{s_xoff}"); P(f"s_mov_b32 s{s_wb}, s{s_woff}")
        P(f"s_lshl_b32 s4, s{s_st}, 7"); P(f"s_add_u32 s{s_xoff}, s{s_xb}, s4")
        P(f"s_lshl_b32 s4, s{s_st}, 19"); P(f"s_add_u32 s{s_woff}, s{s_wb}, s4")

def p1_scalar2(P, o):
    P(f"s_lshl_b32 s4, s{s_b}, 5"); P(f"s_add_u32 s4, s4, s{s_h}")
    P(f"s_mul_i32 s{s_kvoff}, s4, 12288")
    P(f"s_lshl_b32 s4, s{s_br}, 3"); P(f"s_lshr_b32 s5, s{s_b}, 1"); P("s_add_u32 s4, s4, s5")
    P(f"s_mul_i32 s4, s4, {o.oblk}"); P(f"s_mul_i32 s{s_ooff}, s{s_h}, 24576"); P(f"s_add_u32 s{s_ooff}, s{s_ooff}, s4")
    P(f"s_and_b32 s5, s{s_b}, 1"); P("s_mul_i32 s5, s5, 3072"); P(f"s_add_u32 s{s_ooff}, s{s_ooff}, s5")
    P(f"s_mov_b32 s{s_kb}, {KV_BASE[0]}")
    for w in (1, 2, 3):
        P(f"s_cmp_eq_u32 s3, {w}"); P(f"s_cselect_b32 s{s_kb}, {KV_BASE[w]}, s{s_kb}")
    P(f"s_mov_b32 s{s_cs}, {f32bits(math.log2(math.e)/math.sqrt(128.0))}")
    P(f"s_lshl_b32 s4, s{s_br}, 4"); P(f"s_lshl_b32 s5, s{s_bg}, 2"); P("s_add_u32 s4, s4, s5")
    P(f"s_lshr_b32 s5, s{s_h}, 3"); P("s_add_u32 s4, s4, s5"); P(f"s_lshl_b32 s{s_sig}, s4, 3")
    P(f"s_mov_b32 s{s_t0}, s{s_kvoff}"); P(f"s_add_u32 s{s_t0+1}, s{s_kvoff}, 4096"); P(f"s_add_u32 s{s_t0+2}, s{s_kvoff}, 8192")
    if o.p2map == 'A':
        P(f"s_and_b32 s4, s{s_hg}, 1"); P("s_lshl_b32 s4, s4, 2"); P(f"s_and_b32 s5, s{s_idx}, 3"); P(f"s_add_u32 s{s_rt}, s4, s5")
        P(f"s_lshr_b32 s4, s{s_hg}, 1"); P("s_lshl_b32 s4, s4, 3"); P(f"s_lshr_b32 s5, s{s_idx}, 2"); P(f"s_add_u32 s{s_ct}, s4, s5")
    else:
        P(f"s_and_b32 s{s_rt}, s{s_idx}, 7")
        if o.cmap == 0:
            P(f"s_lshl_b32 s4, s{s_hg}, 2"); P(f"s_lshr_b32 s5, s{s_idx}, 3"); P(f"s_add_u32 s{s_ct}, s4, s5")
        elif o.cmap == 1:
            P(f"s_lshr_b32 s5, s{s_idx}, 3"); P("s_lshl_b32 s5, s5, 2"); P(f"s_add_u32 s{s_ct}, s{s_hg}, s5")
        else:
            P(f"s_lshr_b32 s5, s{s_idx}, 3"); P(f"s_and_b32 s4, s5, 1"); P(f"s_lshr_b32 s5, s5, 1"); P("s_lshl_b32 s5, s5, 2"); P("s_add_u32 s4, s4, s5")
            P(f"s_and_b32 s5, s{s_hg}, 1"); P("s_lshl_b32 s5, s5, 1"); P("s_add_u32 s4, s4, s5")
            P(f"s_lshr_b32 s5, s{s_hg}, 1"); P("s_lshl_b32 s5, s5, 3"); P(f"s_add_u32 s{s_ct}, s4, s5")
    P.extend(p2_slots789())
    P(f"s_lshl_b32 s4, s{s_br}, 4"); P(f"s_lshr_b32 s5, s{s_rt}, 1"); P("s_lshl_b32 s5, s5, 2"); P("s_add_u32 s4, s4, s5")
    P("s_add_u32 s4, s4, s3"); P(f"s_lshl_b32 s{s_poll}, s4, 3")

def p1_vector_a(P):
    P("v_lshrrev_b32 v1, 3, v0")
    P("v_lshrrev_b32 v2, 4, v0")
    P("v_and_b32 v3, 15, v0")
    P("v_lshrrev_b32 v4, 1, v3"); P("v_and_b32 v5, 1, v0")
    for j in range(4):
        if j in (0, 2):
            P(f"v_or_b32 v6, {(j>>1)<<2}, v2"); P("v_xor_b32 v6, v6, v4"); P("v_lshlrev_b32 v6, 5, v6")
            P("v_lshl_add_u32 v6, v5, 4, v6"); P("v_lshl_add_u32 v6, v2, 13, v6")
        P(f"v_add_u32 v{V_W+j}, {4*j*8192 - j*1024}, v6")
    P("v_and_b32 v4, 7, v0")
    for par in range(2):
        P(f"v_or_b32 v6, {4*par}, v2"); P("v_xor_b32 v6, v6, v4"); P("v_lshlrev_b32 v6, 4, v6")
        P("v_lshl_add_u32 v6, v1, 11, v6")
        for i in range(par, 6, 2):
            imm = (i if i < 4 else i-4)*1024
            P(f"v_add_u32 v{V_X+i}, {8*i*2048-imm}, v6")

def p1_vector_b(P):
    P("v_lshrrev_b32 v4, 2, v3")
    P("v_and_b32 v5, 3, v0")
    P("v_and_b32 v6, 1, v2"); P("v_lshl_or_b32 v6, v6, 2, v4")
    P("v_lshl_add_u32 v7, v2, 3, v4"); P("v_lshlrev_b32 v7, 8, v7"); P("v_lshl_add_u32 v7, v5, 3, v7")
    P(f"v_lshl_add_u32 v{V_TA}, v6, 5, v7")
    for tt in range(1, 8): P(f"v_xor_b32 v{V_TA+tt}, {tt*32}, v{V_TA}")
    P("v_lshrrev_b32 v6, 1, v3"); P("v_xor_b32 v6, v6, v2"); P("v_lshlrev_b32 v6, 4, v6"); P("v_lshl_add_u32 v6, v3, 7, v6")
    P(f"v_add_u32 v{V_XR}, s{s_mx}, v6"); P(f"v_xor_b32 v{V_XR+1}, 64, v{V_XR}")
    P(f"v_lshlrev_b32 v{V_L16}, 4, v0")
    P(f"v_mul_u32_u24 v6, {K_STRIDE}, v2"); P("v_lshl_add_u32 v6, v3, 4, v6"); P(f"v_add_u32 v{V_KW}, s{s_kb}, v6")
    P(f"v_mul_u32_u24 v6, {V_STRIDE}, v2"); P("v_lshl_add_u32 v6, v3, 4, v6"); P(f"v_add_u32 v{V_VW}, s{s_kb}, v6")
    P(f"v_mul_u32_u24 v6, {K_STRIDE}, v3"); P("v_lshl_add_u32 v6, v2, 3, v6"); P(f"v_add_u32 v{V_KR}, s{s_kb}, v6")
    P("v_lshl_add_u32 v6, v2, 2, v4")
    P(f"v_mul_u32_u24 v7, {V_STRIDE}, v6"); P("v_lshl_add_u32 v7, v5, 3, v7"); P(f"v_add_u32 v{V_VR}, s{s_kb}, v7")
    P("v_lshrrev_b32 v7, 1, v6"); P("v_and_b32 v7, 3, v7")
    P("v_lshlrev_b32 v6, 7, v6"); P("v_lshl_add_u32 v6, v5, 3, v6"); P("v_lshl_add_u32 v6, v7, 5, v6")
    P(f"v_mov_b32 v{V2_TA}, v6")
    for tn in range(1, 4): P(f"v_xor_b32 v{V2_TA+tn}, {tn*32}, v{V2_TA}")
    P("v_and_b32 v6, 7, v0"); P("v_lshrrev_b32 v6, 1, v6"); P("v_xor_b32 v6, v6, v2"); P("v_lshlrev_b32 v6, 5, v6")
    P("v_and_b32 v7, 1, v0"); P("v_lshl_add_u32 v6, v7, 4, v6")
    P(f"v_lshl_add_u32 v{V2_WD}, v1, 11, v6")
    for j in range(1, 4): P(f"v_add_u32 v{V2_WD+j}, {j*(16384-1024)}, v{V2_WD}")

def dma_stage(s, o):
    slot = s % 3; L = []; tag = f"dma{s}"
    L.append(mk(f"s_add_u32 m0, s{s_mw}, {LDS_W + slot*16384}"))
    for j in range(4):
        L.append(mk(f"buffer_load_dwordx4 v{V_W+j}, {srd(sWQ)}, s{s_woff} offen offset:{j*1024} {o.nt_w} lds", tag))
    L.append(mk(f"s_add_u32 m0, s{s_mx}, {slot*24576}"))
    for i in range(4):
        L.append(mk(f"buffer_load_dwordx4 v{V_X+i}, {srd(sX)}, s{s_xoff} offen offset:{i*1024} {o.nt_x} lds", tag))
    L.append(mk(f"s_add_u32 m0, s{s_mx}, {slot*24576+4096}"))
    for i in (4, 5):
        L.append(mk(f"buffer_load_dwordx4 v{V_X+i}, {srd(sX)}, s{s_xoff} offen offset:{(i-4)*1024} {o.nt_x} lds", tag))
    if o.perm is not None:
        if s < 15:
            src = s_st if s+1 < 8 else s_pm2
            L.append(mk(f"s_bfe_u32 s4, s{src}, {hex((4 << 16) | (4*((s+1) & 7)))}"))
            L.append(mk(f"s_lshl_b32 s5, s4, 7"))
            L.append(mk(f"s_add_u32 s{s_xoff}, s{s_xb}, s5"))
            L.append(mk(f"s_lshl_b32 s4, s4, 19"))
            L.append(mk(f"s_add_u32 s{s_woff}, s{s_wb}, s4"))
    elif not o.rot:
        L.append(mk(f"s_add_u32 s{s_woff}, s{s_woff}, {64*8192}"))
        L.append(mk(f"s_add_u32 s{s_xoff}, s{s_xoff}, 128"))
    else:
        blk = ((s+1)//o.rb)*o.rb
        L.append(mk(f"s_add_u32 s{s_st}, s{s_st}, 1"))
        L.append(mk(f"s_and_b32 s{s_st}, s{s_st}, {o.rb-1}"))
        L.append(mk(f"s_or_b32 s4, s{s_st}, {blk}"))
        L.append(mk(f"s_lshl_b32 s5, s4, 7"))
        L.append(mk(f"s_add_u32 s{s_xoff}, s{s_xb}, s5"))
        L.append(mk(f"s_lshl_b32 s4, s4, 19"))
        L.append(mk(f"s_add_u32 s{s_woff}, s{s_wb}, s4"))
    return L

def frag_reads(s, ss):
    slot = s % 3; buf = (2*s+ss) & 1; L = []
    for u in range(3):
        L.append(mk(f"ds_read_b128 {ar(fb(buf,u),4)}, v{V_XR+ss} offset:{slot*24576 + u*2048}", f"fr{s}"))
    for t in range(8):
        for j in range(2):
            L.append(mk(f"ds_read_b64_tr_b16 {ar(fa(buf,t)+2*j,2)}, v{V_TA+t} offset:{slot*16384 + ss*8192 + j*1024}", f"fr{s}"))
    return L

def mfma_block(s, ss):
    buf = (2*s+ss) & 1; L = []
    for t in range(8):
        for u in range(3):
            c = "0" if (s == 0 and ss == 0) else vr(acc(t,u),4)
            L.append(mk(f"v_mfma_f32_16x16x32_bf16 {vr(acc(t,u),4)}, {ar(fa(buf,t),4)}, {ar(fb(buf,u),4)}, {c}"))
    return L

def kv_loads(o):
    L = []
    for i in range(24):
        isv = i >= 12; ii = i % 12
        L.append(mk(f"buffer_load_dwordx4 {ar(A_KV+4*i,4)}, v{V_L16}, {srd(sV if isv else sK)}, s{s_t0 + (ii//4)} offen offset:{(ii%4)*1024} {o.nt_kv}", "kv"))
    return L

def split_dma(L):
    n = 0
    for k, i in enumerate(L):
        if i.kind == 'dma':
            n += 1
            if n == 5: return L[:k+1], L[k+1:]
    return L, []

def anchor(L, gaps):
    T = []; j = 0
    for i in L:
        if i.kind in ('dma', 'vload', 'vstore'):
            T.append((gaps[min(j, len(gaps)-1)], i)); j += 1
        else:
            g = gaps[j]-1 if j < len(gaps) else gaps[-1]
            T.append((max(g, 0), i))
    return T

def fill_gaps(mf, timed, per_gap=2):
    out = []; pend = list(timed)
    for k, m in enumerate(mf):
        out.append(m)
        n = 0; j = 0
        while n < per_gap and j < len(pend):
            if pend[j][0] <= k:
                out.append(pend.pop(j)[1]); n += 1
            else: j += 1
    out.extend(x[1] for x in pend)
    return out

s_ws = 14
def p2_tables(o):
    L = []; A = lambda x: L.append(mk(x))
    A(f"s_lshl_b32 s12, s{s_br}, 3"); A(f"s_add_u32 s12, s12, s{s_rt}"); A(f"s_mul_i32 s12, s12, {o.oblk}")
    A(f"s_mul_i32 s13, s3, {8*24576}"); A(f"s_add_u32 s{s_oo}, s12, s13")
    A(f"s_lshl_b32 s{s_wo2}, s3, 21"); A(f"s_lshl_b32 s12, s{s_ct}, 7"); A(f"s_add_u32 s{s_wo2}, s{s_wo2}, s12")
    if o.p2map == 'A':
        A(f"s_and_b32 s12, s{s_idx}, 3"); A(f"s_lshr_b32 s13, s{s_idx}, 2")
    else:
        A(f"s_and_b32 s12, s{s_idx}, 7"); A(f"s_lshr_b32 s13, s{s_idx}, 3")
    A(f"s_mul_i32 s12, s12, {o.p2rot_r}"); A(f"s_mul_i32 s13, s13, {o.p2rot_c}"); A(f"s_add_u32 s12, s12, s13")
    A(f"s_and_b32 s{s_ws}, s12, {o.R-1}")
    A("s_lshl_b32 s12, s3, 12")
    for k, base in enumerate((122880 + 5*4096, 16384, 73728, 32768, 98304, 0, 49152)):
        A(f"s_add_u32 s{S_SLOT[k]}, s12, {base}")
    return L
def p2_slots789():
    tab = [(90112, 94208, 114688), (118784, 65536, 69632), (122880, 126976, 131072), (135168, 139264, 159744)]
    L = []; A = lambda x: L.append(mk(x))
    for k in range(3): A(f"s_mov_b32 s{S_SLOT[7+k]}, {tab[0][k]}")
    for w in (1, 2, 3):
        A(f"s_cmp_eq_u32 s3, {w}")
        for k in range(3): A(f"s_cselect_b32 s{S_SLOT[7+k]}, {tab[w][k]}, s{S_SLOT[7+k]}")
    return L
S_WT = 20
def wtable_words(o):
    out = []
    for seq in o.wperm:
        w = [0]*8
        for l, k in enumerate(seq): w[l//6] |= k << (5*(l % 6))
        out.append(w)
    return out
def load_wtable(P, o):
    if o.wperm is None: return
    n = len(o.wperm)
    if o.w2d:
        if o.p2map == 'A': P(f"s_and_b32 s4, s{s_idx}, 3"); P(f"s_lshr_b32 s5, s{s_idx}, 2")
        else: P(f"s_and_b32 s4, s{s_idx}, 7"); P(f"s_lshr_b32 s5, s{s_idx}, 3")
        P(f"s_mul_i32 s5, s5, {o.w2d}"); P("s_add_u32 s4, s4, s5"); P(f"s_and_b32 s4, s4, {n-1}")
    else: P(f"s_and_b32 s4, s{s_idx}, {n-1}")
    P("s_lshl_b32 s4, s4, 5")
    P("s_getpc_b64 s[6:7]")
    P("L_pc:")
    P("s_add_u32 s6, s6, L_wtab-L_pc"); P("s_addc_u32 s7, s7, 0")
    P("s_add_u32 s6, s6, s4"); P("s_addc_u32 s7, s7, 0")
    P("s_load_dwordx4 s[20:23], s[6:7], 0"); P("s_load_dwordx2 s[24:25], s[6:7], 16")
def actual_step(l, o, dst):
    if o.wperm is not None:
        return [mk(f"s_bfe_u32 {dst}, s{S_WT + l//6}, {hex((5 << 16) | (5*(l % 6)))}")]
    R = o.R
    L = [mk(f"s_add_u32 {dst}, s{s_ws}, {l & (R-1)}"), mk(f"s_and_b32 {dst}, {dst}, {R-1}")]
    blk = (l // R)*R
    if blk: L.append(mk(f"s_or_b32 {dst}, {dst}, {blk}"))
    return L

def kv_stage(c):
    if c < 3:
        kt = c
        w = [mk(f"ds_write_b128 v{V_KW}, {ar(A_KV+16*c+4*i,4)} offset:{i*4*K_STRIDE}") for i in range(4)]
        r = [mk(f"ds_read_b64 {ar(kf(kt,p)+2*j,2)}, v{V_KR} offset:{64*p + 32*j}") for p in range(4) for j in range(2)]
    else:
        kt = c - 3
        w = [mk(f"ds_write_b128 v{V_VW}, {ar(A_KV+16*c+4*i,4)} offset:{i*4*V_STRIDE}") for i in range(4)]
        r = [mk(f"ds_read_b64_tr_b16 {ar(vf(t)+2*kt,2)}, v{V_VR} offset:{32*t}") for t in range(8)]
    return w, r

def p1_main(P, o):
    kv = kv_loads(o)
    kvq = {}
    if o.kvmode == 'spread': kvq = {c: 2*c+1 for c in range(6)}
    else:
        for q, (a0, a1) in o.kvmode.items():
            for c in range(a0//4, (a1+3)//4): kvq[c] = q
    dsx = {}
    last = -1
    for c in range(6 if not o.vblocks else 3):
        w, r = kv_stage(c)
        nb = max(2*(kvq[c]+2)+1, last+2)
        dsx.setdefault(nb, []).extend(w); dsx.setdefault(nb+1, []).extend(r); last = nb
    assert last+1 <= 31, last
    tb = p2_tables(o)
    sal = {24: tb[:len(tb)//2], 25: tb[len(tb)//2:]}
    early = {27: [0], 28: [1], 29: [2], 30: [3], 31: [4]} if o.n_early == 5 else ({27: [0], 28: [1, 2]} if o.n_early == 3 else {})
    if o.n_early == 5: early = {27: [0, 1], 28: [2], 29: [3], 30: [4]}
    plan = {}
    delayed = getattr(o, 'delayed', ())
    for st in range(2 if o.pro == 1 else 3, 16):
        h1, h2 = split_dma(dma_stage(st, o))
        if st == 2: b1, b2 = (0, 0) if st not in delayed else (0, 1)
        else: b1, b2 = (2*st-5, 2*st-4) if st not in delayed else (2*st-4, 2*st-3)
        assert b2 <= 2*st-2
        plan.setdefault(b1, []).append((st, 0, h1)); plan.setdefault(b2, []).append((st, 1, h2))
    P.wait(vm="dma0"); P("s_barrier")
    stamp(P, o, 1)
    P.extend(frag_reads(0, 0))
    for s in range(16):
        for ss in range(2):
            n = 2*s + ss
            vm = []
            for (st, hf, L) in sorted(plan.get(n, []), key=lambda x: (x[0], x[1])): vm += L
            if ss == 0:
                P.wait(lgkm=0)
                f = frag_reads(s, 1)
                if o.kvmode == 'spread':
                    if s < 12: vm += kv[2*s:2*s+2]
                elif s in o.kvmode: a0, a1 = o.kvmode[s]; vm += kv[a0:a1]
            else:
                if s + 1 <= 15:
                    P.wait(vm=f"dma{s+1}", lgkm=0); P("s_barrier")
                    if o.stage_stamps and (s+1) % 2 == 0: stamp(P, o, (s+1)//2 + 1, True)
                else:
                    P.wait(lgkm=0)
                f = frag_reads(s+1, 0) if s+1 <= 15 else []
            if o.vblocks and n in o.vblocks: a0, a1 = o.vblocks[n]; vm = vm + kv[a0:a1]
            for l in early.get(n, []): vm = vm + wo_dma(l, o)
            nv = sum(1 for i in vm if i.kind in ('dma', 'vload'))
            gaps = [2 + (k*21)//max(nv,1) for k in range(nv)] if nv else [0]
            T = anchor(vm, gaps) + [((k*2)//3, i) for k, i in enumerate(f)] + [(11+k//2, i) for k, i in enumerate(dsx.get(n, []))]
            T += [(12 + k//2, i) for k, i in enumerate(sal.get(n, []))]
            P.extend(fill_gaps(mfma_block(s, ss), T))
    P.wait(lgkm=0)
    P("s_barrier")
    stamp(P, o, 9 if o.stage_stamps else 2, True)

def wo_dma(l, o):
    L = actual_step(l, o, f"s{s_wcur}")
    L += [mk(f"s_lshl_b32 s{s_wcur}, s{s_wcur}, 16"), mk(f"s_add_u32 s{s_wcur}, s{s_wcur}, s{s_wo2}"),
          mk(f"s_mov_b32 m0, s{S_SLOT[l % NSLOT]}")]
    for j in range(4):
        L.append(mk(f"buffer_load_dwordx4 v{V2_WD+j}, {srd(sWO)}, s{s_wcur} offen offset:{j*1024} {o.nt_wo} lds", f"wo{l}"))
    return L
V2_TT = 4
def wo_tr(l):
    L = []
    for tn in range(4):
        L.append(mk(f"v_add_u32 v{V2_TT+tn}, s{S_SLOT[l % NSLOT]}, v{V2_TA+tn}"))
    for tn in range(4):
        for j in range(2):
            L.append(mk(f"ds_read_b64_tr_b16 {rq(woq(l, tn), 2*j, 2)}, v{V2_TT+tn} offset:{j*2048}", f"tr{l}"))
    return L

def softmax_chain(u):
    L = []
    S = [sa(kt, u) + r for kt in range(3) for r in range(4)]
    m = V_M + 4*u; t = m + 1; t2 = m + 2; t3 = m + 3
    A = lambda x: L.append(mk(x))
    A(f"v_max3_f32 v{m}, v{S[0]}, v{S[1]}, v{S[2]}")
    A(f"v_max3_f32 v{t}, v{S[3]}, v{S[4]}, v{S[5]}")
    A(f"v_max3_f32 v{t2}, v{S[6]}, v{S[7]}, v{S[8]}")
    A(f"v_max3_f32 v{t3}, v{S[9]}, v{S[10]}, v{S[11]}")
    A(f"v_max3_f32 v{m}, v{m}, v{t}, v{t2}")
    A(f"v_max_f32 v{m}, v{m}, v{t3}")
    for sw in ("v_permlane16_swap_b32", "v_permlane32_swap_b32"):
        A(f"v_mov_b32 v{t}, v{m}")
        A(f"{sw} v{m}, v{t}")
        A(f"v_max_f32 v{m}, v{m}, v{t}")
    A(f"v_mul_f32 v{m}, s{s_cs}, v{m}")
    for x in S: A(f"v_fma_f32 v{x}, v{x}, s{s_cs}, -v{m}")
    for x in S: A(f"v_exp_f32 v{x}, v{x}")
    A(f"v_add_f32 v{t}, v{S[0]}, v{S[1]}")
    A(f"v_add_f32 v{t2}, v{S[2]}, v{S[3]}")
    A(f"v_add_f32 v{t3}, v{S[4]}, v{S[5]}")
    A(f"v_add_f32 v{m}, v{S[6]}, v{S[7]}")
    A(f"v_add_f32 v{t}, v{t}, v{S[8]}")
    A(f"v_add_f32 v{t2}, v{t2}, v{S[9]}")
    A(f"v_add_f32 v{t3}, v{t3}, v{S[10]}")
    A(f"v_add_f32 v{m}, v{m}, v{S[11]}")
    A(f"v_add_f32 v{t}, v{t}, v{t2}")
    A(f"v_add_f32 v{m}, v{m}, v{t3}")
    A(f"v_add_f32 v{m}, v{m}, v{t}")
    for sw in ("v_permlane16_swap_b32", "v_permlane32_swap_b32"):
        A(f"v_mov_b32 v{t}, v{m}")
        A(f"{sw} v{m}, v{t}")
        A(f"v_add_f32 v{m}, v{m}, v{t}")
    A(f"v_rcp_f32 v{m}, v{m}")
    for x in S: A(f"v_mul_f32 v{x}, v{x}, v{m}")
    for k in range(6):
        A(f"v_cvt_pk_bf16_f32 v{pb(u)+k}, v{S[2*k]}, v{S[2*k+1]}")
    return L

def attention(P, o):
    L = []; A = lambda x, tag=None: L.append(mk(x, tag))
    for p in range(4): A(f"s_add_u32 s{s_t0+p}, s{s_ooff}, {p*6144}")
    for u in range(3):
        for p in range(4):
            for hf in range(2):
                a0 = acc(2*p+hf, u)
                A(f"v_cvt_pk_bf16_f32 v{qb(u,p)+2*hf}, v{a0}, v{a0+1}")
                A(f"v_cvt_pk_bf16_f32 v{qb(u,p)+2*hf+1}, v{a0+2}, v{a0+3}")
    for u in range(3):
        for p in range(4):
            for kt in range(3):
                c = "0" if p == 0 else vr(sa(kt,u),4)
                A(f"v_mfma_f32_16x16x32_bf16 {vr(sa(kt,u),4)}, {ar(kf(kt,p),4)}, {vr(qb(u,p),4)}, {c}")
    for u in range(3): L.extend(softmax_chain(u))
    rel = {}; edges = []
    if o.vblocks:
        assert o.n_attn <= 7 and o.n_pre <= 7 and o.tr_attn == 0
        prev = None
        for c in (3, 4, 5):
            w, r = kv_stage(c)
            for i in w:
                rel[len(L)] = o.vrel + (c-3)*o.vstep; L.append(i)
                if prev:
                    for j in prev: edges.append((j, i, 0))
            for i in r:
                L.append(i)
                for j in w: edges.append((j, i, 20))
            prev = r
    for u in range(3):
        for t in range(8):
            A(f"v_mfma_f32_16x16x32_bf16 {vr(acc(t,u),4)}, {ar(vf(t),4)}, {vr(pb(u),4)}, 0")
        for t in range(8):
            A(f"v_mfma_f32_16x16x16_bf16 {vr(acc(t,u),4)}, {ar(vf(t)+4,2)}, {vr(pb(u)+4,2)}, {vr(acc(t,u),4)}")
    for u in range(3):
        for p in range(4):
            for hf in range(2):
                a0 = acc(2*p+hf, u)
                A(f"v_cvt_pk_bf16_f32 v{qb(u,p)+2*hf}, v{a0}, v{a0+1}")
                A(f"v_cvt_pk_bf16_f32 v{qb(u,p)+2*hf+1}, v{a0+2}, v{a0+3}")
            A(f"buffer_store_dwordx4 {vr(qb(u,p),4)}, v{V_L16}, {srd(sWS)}, s{s_t0+p} offen offset:{u*1024} {o.o_sc}", "ost")
    items = []
    ne = o.n_early
    groups = [('d', l) for l in range(ne, o.n_attn)]
    seq = []
    t_list = list(range(o.tr_attn))
    while groups or t_list:
        if groups: seq.append(groups.pop(0))
        if t_list: seq.append(('t', t_list.pop(0)))
    nslots = len(seq); prev_tr = None
    for k, (kind, l) in enumerate(seq):
        t0 = (k*o.attn_span)//max(nslots, 1)
        if kind == 'd':
            D = wo_dma(l, o); nd = 0
            for i in D:
                rel[len(L)] = t0 + (nd*o.attn_span)//(4*max(nslots,1)) ; L.append(i)
                if i.kind == 'dma': nd += 1
        else:
            wv = mkwait(vm=f"wo{l}", soft=True); rel[len(L)] = t0; L.append(wv)
            T = wo_tr(l)
            for i in T:
                rel[len(L)] = t0; L.append(i)
                if i.kind == 'dsread': edges.append((wv, i, 0))
            if prev_tr is not None:
                for i in T[:4]:
                    for j in prev_tr: edges.append((j, i, 0))
            prev_tr = [i for i in T if i.kind == 'dsread']
            wl = mkwait(lgkm=f"tr{l}", soft=True); rel[len(L)] = t0 + 160; L.append(wl)
            for i in prev_tr: edges.append((i, wl, 100))
            D = wo_dma(l+10, o)
            for i in D:
                rel[len(L)] = t0 + 160; L.append(i)
                if i.kind == 'dma': edges.append((wl, i, 0))
    def sink(i):
        if i.kind == 'vstore' and o.stag:
            m = re.search(r'offset:(\d+)', i.text); u = int(m.group(1))//1024
            return (2-u)*o.stag
        return 0
    order = list_schedule(L, release=rel, verbose=o.verbose, edges=edges, sink_lat=sink, mfma_first=o.mfma_first)
    P.extend(order)
    stamp(P, o, 3)

def gap(P, o):
    issued = set(range(max(o.n_early, o.n_attn))) | {l+10 for l in range(o.tr_attn)}
    def dma(l):
        if l not in issued and l < o.nreg + 10:
            P.extend(wo_dma(l, o)); issued.add(l)
    for l in range(o.n_pre): dma(l)
    P.wait(vm=0 if o.drain else "ost")
    stamp(P, o, 4)
    P("s_barrier").note = 'publish'
    P("s_cmp_lg_u32 s3, 0")
    P("s_cbranch_scc1 L_nosig")
    P("v_mov_b32 v1, 1"); P("v_mov_b32 v2, 0")
    P("s_mov_b64 exec, 1")
    P(f"buffer_atomic_add v1, v2, {srd(sDBG)}, s{s_sig} offen sc1").note = 'slowpath'
    P("s_mov_b64 exec, -1")
    P("L_nosig:")
    P("v_mov_b32 v2, 0")
    for l in range(10): dma(l)
    def poll_load(): P(f"buffer_load_dword v1, v2, {srd(sDBG)}, s{s_poll} offen sc1", "poll")
    for l in range(o.tr_attn, o.nreg):
        if l == o.poll_at: poll_load()
        P.wait(vm=f"wo{l}")
        P.extend(wo_tr(l))
        if l >= 1:
            P.wait(lgkm=f"tr{l-1}")
            dma(l-1+10)
    P.wait(lgkm=f"tr{o.nreg-1}"); dma(o.nreg+9)
    stamp(P, o, 5)
    if o.poll_at >= o.nreg: poll_load()
    P.wait(vm="poll")
    P("v_readfirstlane_b32 s4, v1")
    P("s_cmp_ge_u32 s4, 8")
    P("s_cbranch_scc1 L_polldone")
    P("s_mov_b32 s5, 0")
    P("L_poll:")
    P(f"buffer_load_dword v1, v2, {srd(sDBG)}, s{s_poll} offen sc1").note = 'slowpath'
    i = Inst("s_waitcnt vmcnt(0)"); i.note = 'slowpath'; P.add(i)
    P("v_readfirstlane_b32 s4, v1")
    P("s_add_u32 s5, s5, 1")
    P("s_cmp_gt_u32 s5, 0x40000")
    P("s_cbranch_scc1 L_polldone")
    P("s_cmp_lt_u32 s4, 8")
    P("s_cbranch_scc1 L_poll")
    P("L_polldone:")
    stamp(P, o, 6)

def o_load(i, f, o):
    r = V2_O + (i % o.DO)*24 + f*4
    sreg = s_t0 + (i & 1)*2 + (1 if f >= 4 else 0)
    return mk(f"buffer_load_dwordx4 {vr(r,4)}, v{V_L16}, {srd(sWS)}, s{sreg} offen offset:{(f if f < 4 else f-4)*1024} {o.o_ld}", f"o{i}")
def o_soff(i, o):
    b = s_t0 + (i & 1)*2
    L = actual_step(i, o, f"s{b}")
    L += [mk(f"s_mul_i32 s{b}, s{b}, 6144"), mk(f"s_add_u32 s{b}, s{b}, s{s_oo}"), mk(f"s_add_u32 s{b+1}, s{b}, 4096")]
    return L

def p2_main(P, o):
    DO = o.DO
    for i in range(DO):
        P.extend(o_soff(i, o))
        for f in range(6): P.add(o_load(i, f, o))
    P("v_lshrrev_b32 v1, 3, v0"); P("v_lshrrev_b32 v2, 4, v0"); P("v_and_b32 v3, 15, v0"); P("v_and_b32 v4, 7, v0")
    P(f"s_mul_i32 s4, s3, {RED_WAVE}")
    P(f"v_mul_u32_u24 v5, {RED_STRIDE}, v3"); P("v_lshl_add_u32 v5, v2, 4, v5"); P(f"v_add_u32 v{V2_RW}, s4, v5")
    P(f"s_mul_i32 s4, s3, {24*RED_STRIDE}")
    P(f"v_mul_u32_u24 v5, {RED_STRIDE}, v1"); P("v_lshl_add_u32 v5, v4, 5, v5"); P(f"v_add_u32 v{V2_RR}, s4, v5")
    P(f"v_add_u32 v{V2_RR+1}, {2*RED_WAVE}, v{V2_RR}")
    P("v_lshlrev_b32 v5, 12, v1"); P(f"v_lshl_add_u32 v{V2_OUT}, v4, 4, v5")
    P(f"s_mul_i32 s{s_outoff}, s{s_rt}, {96*4096}"); P(f"s_lshl_b32 s4, s{s_br}, 11"); P(f"s_add_u32 s{s_outoff}, s{s_outoff}, s4")
    P(f"s_lshl_b32 s4, s{s_ct}, 7"); P(f"s_add_u32 s{s_outoff}, s{s_outoff}, s4")
    P(f"s_mul_i32 s4, s3, {24*4096}"); P(f"s_add_u32 s{s_outoff}, s{s_outoff}, s4")
    for i in range(32):
        if i >= o.nreg: P.wait(lgkm=0)
        if i == 31 and o.tail2: P("s_barrier")
        mf = []
        for f in range(6):
            for tn in range(4):
                c = "0" if i == 0 else vr(acc2(tn,f),4)
                mf.append(mk(f"v_mfma_f32_16x16x32_bf16 {vr(acc2(tn,f),4)}, {rq(woq(i, tn), 0, 4)}, {vr(V2_O+(i%DO)*24+f*4,4)}, {c}"))
        T = []
        if i+DO < 32: T += [(0, x) for x in o_soff(i+DO, o)]
        if o.nreg <= i+1 < 32:
            T.append((1, mkwait(vm=f"wo{i+1}")))
            T += [(1, x) for x in wo_tr(i+1)]
        if i+DO < 32: T += [(4*f+3, o_load(i+DO, f, o)) for f in range(6)]
        if o.nreg <= i < 22:
            T += [(5+2*k, x) for k, x in enumerate(wo_dma(i+10, o))]
        if i == 31 and o.tail2:
            T += [(min(4*f+tn+5, 23), mk(f"ds_write_b128 v{V2_RW}, {vr(acc2(tn,f),4)} offset:{f*16*RED_STRIDE + tn*64}")) for f in range(6) for tn in range(4) if 4*f+tn+5 <= 23]
        P.extend(fill_gaps(mf, T))
    stamp(P, o, 7)

def p2_epilogue(P, o):
    if not o.tail2: P("s_barrier")
    for f in range(6):
        for tn in range(4):
            if o.tail2 and 4*f+tn+5 <= 23: continue
            P(f"ds_write_b128 v{V2_RW}, {vr(acc2(tn,f),4)} offset:{f*16*RED_STRIDE + tn*64}")
    P.wait(lgkm=0); P("s_barrier")
    for i in range(3):
        for wv in range(4):
            for h in range(2):
                P(f"ds_read_b128 {vr(V2_R + (i*4+wv)*8 + 4*h, 4)}, v{V2_RR + (wv>>1)} offset:{(wv&1)*RED_WAVE + i*8*RED_STRIDE + 16*h}")
    for i in range(3):
        b = V2_R + i*32
        for e in range(8):
            P(f"v_add_f32 v{b+e}, v{b+e}, v{b+8+e}")
            P(f"v_add_f32 v{b+16+e}, v{b+16+e}, v{b+24+e}")
        for e in range(8): P(f"v_add_f32 v{b+e}, v{b+e}, v{b+16+e}")
        for e in range(4): P(f"v_cvt_pk_bf16_f32 v{b+e}, v{b+2*e}, v{b+2*e+1}")
        P(f"s_add_u32 s4, s{s_outoff}, {i*8*4096}")
        P(f"buffer_store_dwordx4 {vr(b,4)}, v{V2_OUT}, {srd(sOUT)}, s4 offen {o.out_sc}")
    stamp(P, o, 8)

def write_stamps(P, o, n):
    if not o.stamps: return
    P.wait(lgkm=0)
    P("v_mov_b32 v1, 0")
    for j in range(2*n): P(f"v_writelane_b32 v1, s{S_STAMP+j}, {j}")
    P("s_lshl_b32 s4, s2, 2"); P("s_add_u32 s4, s4, s3"); P("s_lshl_b32 s4, s4, 7"); P(f"s_add_u32 s4, s4, {STAMP_OFF}")
    P("v_lshlrev_b32 v2, 2, v0")
    P(f"s_mov_b64 exec, {hex((1<<(2*n))-1)}")
    P(f"buffer_store_dword v1, v2, {srd(sWS)}, s4 offen")
    P("s_mov_b64 exec, -1")

def kernel_text(name, insts):
    return f""".text
.globl {name}
.p2align 8
.type {name},@function
{name}:
{text_of(insts)}
.section .rodata,"a"
.p2align 6
.amdhsa_kernel {name}
  .amdhsa_next_free_vgpr 512
  .amdhsa_next_free_sgpr 102
  .amdhsa_accum_offset 256
  .amdhsa_group_segment_fixed_size 0
  .amdhsa_kernarg_size 104
  .amdhsa_user_sgpr_count 2
  .amdhsa_user_sgpr_kernarg_segment_ptr 1
  .amdhsa_system_sgpr_workgroup_id_x 1
.end_amdhsa_kernel
.text
"""

def gen_kernel(name, o):
    NREG[0] = o.nreg; ARCH0[0] = V2_O + 24*o.DO
    assert ARCH0[0] + 16*(o.nreg-16) <= 256
    P = Prog()
    prologue(P, o)
    p1_scalar(P, o)
    p1_vector_a(P)
    build_srds(P)
    if o.pro_stamps: stamp(P, o, 3, True)
    for s in range(3 if o.pro == 0 else 1):
        P.extend(dma_stage(s, o))
        if o.pro_stamps: stamp(P, o, 4+s, True)
    build_srds2(P)
    p1_scalar2(P, o)
    load_wtable(P, o)
    p1_vector_b(P)
    if o.pro >= 1: P.extend(dma_stage(1, o))
    if o.pro == 2: P.extend(dma_stage(2, o))
    if o.touch:
        P("v_mov_b32 v7, 0")
        P("s_lshl_b32 s4, s3, 21")
        P(f"buffer_load_dword v254, v7, {srd(sWO)}, s4 offen", "touch")
        P(f"s_mul_i32 s4, s{s_rt}, {96*4096}")
        P(f"buffer_load_dword v254, v7, {srd(sOUT)}, s4 offen", "touch")
        if o.touch >= 2:
            P(f"buffer_load_dword v254, v7, {srd(sK)}, s{s_kvoff} offen", "touch")
            P(f"buffer_load_dword v254, v7, {srd(sV)}, s{s_kvoff} offen", "touch")
        if o.touch >= 3:
            assert o.oblk == 1 << 20
            P(f"s_and_b32 s4, s{s_ooff}, 0xfff00000"); P("s_add_u32 s4, s4, 0xc0000")
            P(f"buffer_load_dword v254, v7, {srd(sWS)}, s4 offen", "touch")
            P(f"s_lshl_b32 s4, s{s_br}, 3"); P(f"s_add_u32 s4, s4, s{s_rt}"); P("s_lshl_b32 s4, s4, 20"); P("s_add_u32 s4, s4, 0xc0000")
            P(f"buffer_load_dword v254, v7, {srd(sWS)}, s4 offen", "touch")
    if o.pro_stamps: stamp(P, o, 7, True)
    if o.upto >= 1:
        if isinstance(o.kvmode, list):
            P(f"s_mul_i32 s4, s{s_bg}, {o.phi[0]}"); P(f"s_lshr_b32 s5, s{s_idx}, 2"); P(f"s_mul_i32 s5, s5, {o.phi[1]}")
            P("s_add_u32 s4, s4, s5"); P("s_and_b32 s4, s4, 3")
            modes = o.kvmode
            for ph in (1, 2, 3):
                P(f"s_cmp_eq_u32 s4, {ph}"); P(f"s_cbranch_scc1 L_var{ph}")
            for ph in range(4):
                if ph: P(f"L_var{ph}:")
                o.kvmode = modes[ph]
                o.delayed = o.delay_sets[ph] if o.delay_sets else ()
                Q = Prog(); p1_main(Q, o)
                sub = resolve_waits(Q.insts + [mkwait(vm=None, lgkm=None)])
                P.add(Inst(".variant_begin")); P.extend(Q.insts); P.add(Inst(".variant_end"))
                if ph < 3: P("s_branch L_varjoin")
            P("L_varjoin:")
            o.kvmode = modes
        else:
            p1_main(P, o)
    if o.upto >= 2: attention(P, o)
    if o.upto >= 3: gap(P, o)
    if o.upto >= 4:
        p2_main(P, o)
        p2_epilogue(P, o)
    if o.endwait or o.stamps: P.wait(vm=0)
    stamp(P, o, 9)
    write_stamps(P, o, 10)
    if o.endwait or o.stamps: P.wait(vm=0)
    P("L_exit:")
    P("s_endpgm")
    if o.wperm is not None:
        P(".p2align 6"); P("L_wtab:")
        for w in wtable_words(o): P(".long " + ", ".join(hex(x) for x in w))
    insts, nops = finalize(P)
    for ta in (False, True):
        for ts in (False, True):
            bad = verify_counters(insts, ta, ts)
            assert not bad, (name, ta, ts, bad[:5])
    txt = kernel_text(name, insts)
    txt = txt.replace(".variant_begin", "").replace(".variant_end", "")
    for lab in ("L_exit", "L_nosig", "L_polldone", "L_poll", "L_var1", "L_var2", "L_var3", "L_varjoin", "L_pc", "L_wtab"):
        txt = re.sub(r'\b' + lab + r'\b', lab + "_" + name[-24:], txt)
    return txt, len(insts), nops

def pioneer_perm(L, period=4, n=16):
    out = []
    for phi in range(period):
        left = list(range(n)); seq = []
        for t in range(n):
            k = t + L if (t % period == phi and t + L in left) else left[0]
            left.remove(k); seq.append(k)
        out.append(seq)
    return out

HEADER = "; concat_heads( MHA block , GQA block ): out = softmax(x Wq K^T / sqrt(d)) V Wo for two branches, one fused launch\n"
def final_file(o):
    t, n, _ = gen_kernel(KNAME, o)
    return HEADER + "; @launch grid=(256,1,1) block=(256,1,1) lds=163840\n" + '.amdgcn_target "amdgcn-amd-amdhsa--gfx950"\n' + t

def build(V, fn="fx"):
    from hipmini import metadata, assemble
    s = '.amdgcn_target "amdgcn-amd-amdhsa--gfx950"\n'; ks = []
    for n, o in V.items():
        t, ni, nops = gen_kernel(n, o); s += t; ks.append((n, 102, 512, 256))
    s += metadata(ks, 13)
    open(f"work/{fn}.s", "w").write(s); assemble(f"work/{fn}.s", f"work/{fn}.co"); print(" ".join(V), ni, nops)

if __name__ == "__main__":
    V = {}
    def k6(*st): return {q:(4*i,4*i+4) for i, q in enumerate(st)}
    base = dict(stamps=True, nt_kv="nt", nreg=20, DO=2, tail2=True, stag=300, poll_at=19, out_sc="sc1",
            perm=pioneer_perm(3), hmap=1, mfma_first=True, p2map='B', R=8, p2rot_c=0, p2rot_r=1, cmap=1, pro=1)
    V["w_ref"] = Opt(**base, n_early=5, n_attn=5, n_pre=5, kvmode=k6(2,4,6,8,10,12))
    vb = {26:(12,16), 27:(16,20), 28:(20,24)}
    vb2 = {24:(12,16), 26:(16,20), 28:(20,24)}
    for ne, na, sp in ((0,0,2000),(0,4,1600),(0,7,2000),(3,5,2000),(3,7,2000)):
        V[f"w_e{ne}_{na}"] = Opt(**base, n_early=ne, n_attn=na, n_pre=na, attn_span=sp, kvmode=k6(3,6,9), vblocks=vb)
        V[f"w2_e{ne}_{na}"] = Opt(**base, n_early=ne, n_attn=na, n_pre=na, attn_span=sp, kvmode=k6(3,6,9), vblocks=vb2)
    build(V)
```

```python
from g3 import *
import sys, shutil
def k6(*st): return {q:(4*i,4*i+4) for i, q in enumerate(st)}
FINAL = dict(n_early=5, nt_kv="nt", nreg=20, DO=2, tail2=True, stag=600, attn_span=2000, poll_at=19, out_sc="sc1",
             p2map='B', R=8, p2rot_c=0, p2rot_r=1, hmap=1, cmap=1, mfma_first=True, pro=1,
             perm=pioneer_perm(2), kvmode=k6(2,4,6,8,10,12), n_attn=5, n_pre=5, ctouch=2, morder='u', nob16=True, merge31=True, tr_pre=3)
if __name__ == "__main__":
    open("../cdna_kernels/concat_heads__mha_block_cached__gqa_block_cached__near_ridge.s", "w").write(final_file(Opt(**FINAL)))
    V = {"x_0": Opt(**FINAL), "x_5": Opt(**FINAL, xor=5), "x_2d": Opt(**FINAL, xor=0x2d), "x_13": Opt(**FINAL, xor=0x13)}
    build(V, "st")
```

```python
import sys, math, re, struct
from asmgen import *

KNAME = "concat_heads__mha_block_cached__gqa_block_cached__near_ridge_kernel"
STAMP_OFF = 16 << 20

sX, sWQ, sK, sV, sWS, sWO, sOUT, sDBG = 32, 36, 40, 44, 48, 52, 56, 60
S_TO, S_TW = 32, 40
s_br, s_h, s_b, s_bg, s_hg, s_idx = 26, 27, 28, 29, 30, 31
s_xoff, s_woff, s_kvoff, s_ooff, s_mx, s_mw = 64, 65, 66, 67, 68, 69
s_t0 = 70
s_kb = 74; s_m2 = 75; s_cs = 76
s_st, s_xb, s_wb = 77, 78, 79
s_pm2 = 75
s_wcur = 15; s_outoff = 78; s_oo = 8; s_wo2 = 9
S_SLOT = [40, 41, 42, 43, 66, 74, 17, 10, 11, 16]
s_rt, s_ct = 18, 19
s_sig, s_poll = 100, 101
S_STAMP = 80

def srd(n): return f"s[{n}:{n+3}]"
def vr(n, c=1): return f"v{n}" if c == 1 else f"v[{n}:{n+c-1}]"
def ar(n, c=1): return f"a{n}" if c == 1 else f"a[{n}:{n+c-1}]"
def f32bits(x): return hex(struct.unpack('<I', struct.pack('<f', x))[0])

class Opt:
    def __init__(self, **kw):
        self.nt_x = ""; self.nt_w = ""; self.nt_kv = ""; self.nt_wo = ""; self.o_sc = "sc1"; self.o_ld = "sc1"; self.out_sc = ""
        self.stamps = False; self.clk = 's_memrealtime'; self.stage_stamps = False
        self.rot = False; self.rb = 8; self.rot_bg = 2; self.rot_h = 1; self.kvmode = 'spread'
        self.p2map = 'A'; self.p2rot_c = 1; self.p2rot_r = 2
        self.n_attn = 10
        self.attn_span = 2600
        self.DO = 3; self.n_pre = 10; self.upto = 9; self.p2exp = ''; self.vrel = 100; self.vstep = 150; self.vblocks = None; self.delay_sets = None; self.oblk = 32*24576; self.pro = 0; self.pro_stamps = False; self.w2d = 0; self.xor = 0; self.drain = True; self.perm_ws = False; self.hmap = 0; self.cmap = 0; self.touch = False; self.pk = False; self.mfma_first = False; self.nreg = 16; self.tail2 = False; self.stag = 0; self.endwait = True; self.wperm = None; self.perm = None; self.phi = (1, 3); self.R = 8; self.n_mid = 0; self.n_early = 5; self.tr_attn = 0; self.poll_at = 16
        self.verbose = False
        self.__dict__.update(kw)

def stamp(P, o, i, stage=False):
    if o.stamps and (stage or not o.stage_stamps or i <= 1): P(f"{o.clk} s[{S_STAMP+2*i}:{S_STAMP+2*i+1}]")

ACC = 8
def acc(t, u): return ACC + (t*3 + u)*4
V_X, V_W, V_TA, V_XR, V_L16 = 104, 110, 114, 122, 124
V_KW, V_VW, V_KR, V_VR = 125, 126, 127, 128
V2_WD, V2_TA = 130, 134
QB = 140
def qb(u, p): return QB + (u*4 + p)*4
SA = 188
def sa(kt, u): return SA + (u*3 + kt)*4
PB = 224
def pb(u): return PB + u*6
V_M = 242
A_KV = 0
def kf(kt, p): return A_KV + (kt*4 + p)*4
def vf(t): return 184 + t*6
A_FA, A_FB = 96, 160
def fa(buf, t): return A_FA + buf*32 + t*4
def fb(buf, u): return A_FB + buf*12 + u*4
LDS_W, LDS_X = 0, 49152
K_STRIDE, V_STRIDE = 272, 288
KV_BASE = [122880 + w*4608 for w in range(4)]
def acc2(tn, f): return 8 + (f*4 + tn)*4
V2_O = 140
V2_RW, V2_RR, V2_OUT = 104, 105, 107
V2_R = 132
_Q1 = list(range(48, 184, 4)) + list(range(232, 256, 4))
_Q2 = list(range(0, 48, 4)) + list(range(184, 232, 4))
NREG = [16]; ARCH0 = [188]
def woq(l, tn):
    if l < 10: return ('a', _Q1[4*l + tn])
    if l < 16: return ('a', _Q2[4*(l-10) + tn])
    if l < NREG[0]: return ('v', ARCH0[0] + 16*(l-16) + 4*tn)
    return ('a', _Q1[4*(l & 1) + tn])
def rq(q, off, n): return f"{q[0]}[{q[1]+off}:{q[1]+off+n-1}]"
NSLOT = 10
RED_STRIDE = 272; RED_WAVE = 96*272

def prologue(P, o):
    P("s_cmp_ge_u32 s2, 0x100")
    P("s_cbranch_scc1 L_exit")
    if o.xor: P(f"s_xor_b32 s2, s2, {o.xor}")
    stamp(P, o, 0)
    P("v_lshrrev_b32 v1, 6, v0")
    P("s_and_b32 s4, s2, 7")
    P("v_readfirstlane_b32 s3, v1")
    P(f"s_lshr_b32 s{s_br}, s4, 2")
    P(f"s_and_b32 s{s_hg}, s4, 3")
    P(f"s_lshr_b32 s{s_idx}, s2, 3")
    P(f"s_mul_i32 s5, s{s_br}, 40")
    P("s_add_u32 s6, s0, s5")
    P("s_addc_u32 s7, s1, 0")
    P("s_load_dwordx8 s[8:15], s[6:7], 0")
    P("s_load_dwordx2 s[16:17], s[6:7], 32")
    P("s_load_dwordx4 s[20:23], s[0:1], 80")
    P("s_load_dwordx2 s[24:25], s[0:1], 96")
    P("v_and_b32 v0, 63, v0")

def build_srds(P):
    P.wait(lgkm=0)
    def one(n, lo, size):
        P(f"s_mov_b32 s{n}, s{lo}"); P(f"s_and_b32 s{n+1}, s{lo+1}, 0xffff")
        P(f"s_mov_b32 s{n+2}, {size}"); P(f"s_mov_b32 s{n+3}, 0x20000")
    one(sWQ, 14, 1024*4096*2); one(sX, 8, 16*48*1024*2)

def build_srds2(P):
    def one(n, lo, size):
        P(f"s_mov_b32 s{n}, s{lo}"); P(f"s_and_b32 s{n+1}, s{lo+1}, 0xffff")
        P(f"s_mov_b32 s{n+2}, {size}"); P(f"s_mov_b32 s{n+3}, 0x20000")
    one(sK, 10, 16*32*48*128*2); one(sV, 12, 16*32*48*128*2)
    one(sWO, 16, 4096*1024*2); one(sOUT, 20, 16*48*2048*2)
    one(sDBG, 22, 256); one(sWS, 24, 268435456)

def p1_scalar(P, o):
    P(f"s_and_b32 s{s_bg}, s{s_idx}, 3")
    P(f"s_lshr_b32 s4, s{s_idx}, 2")
    if o.hmap == 0:
        P(f"s_lshl_b32 s{s_h}, s{s_hg}, 3")
        P(f"s_add_u32 s{s_h}, s{s_h}, s4")
    else:
        P(f"s_lshl_b32 s{s_h}, s4, 2")
        P(f"s_add_u32 s{s_h}, s{s_h}, s{s_hg}")
    P(f"s_lshl_b32 s{s_b}, s{s_bg}, 2")
    P(f"s_add_u32 s{s_b}, s{s_b}, s3")
    P(f"s_mul_i32 s{s_xoff}, s{s_b}, {48*2048}")
    P(f"s_lshl_b32 s4, s3, 17")
    P(f"s_lshl_b32 s{s_woff}, s{s_h}, 8")
    P(f"s_add_u32 s{s_woff}, s{s_woff}, s4")
    P(f"s_mul_i32 s{s_mx}, s3, 6144"); P(f"s_add_u32 s{s_mx}, s{s_mx}, {LDS_X}")
    P(f"s_lshl_b32 s{s_mw}, s3, 12")
    if o.perm is not None:
        P(f"s_mul_i32 s4, s{s_bg}, {o.phi[0]}"); P(f"s_lshr_b32 s5, s{s_idx}, 2"); P(f"s_mul_i32 s5, s5, {o.phi[1]}")
        P("s_add_u32 s4, s4, s5"); P("s_and_b32 s4, s4, 3")
        if o.perm_ws:
            P.wait(lgkm=0)
            P("s_lshl_b32 s4, s4, 3"); P(f"s_add_u32 s4, s4, {20 << 20}")
            P("s_add_u32 s6, s24, s4"); P("s_addc_u32 s7, s25, 0")
            P("s_load_dwordx2 s[18:19], s[6:7], 0")
            P.wait(lgkm=0)
            P(f"s_mov_b32 s{s_st}, s18"); P(f"s_mov_b32 s{s_pm2}, s19")
        else:
            words = [sum(k << (4*i) for i, k in enumerate(p)) for p in o.perm]
            P(f"s_mov_b32 s{s_st}, {words[0] & 0xffffffff}"); P(f"s_mov_b32 s{s_pm2}, {words[0] >> 32}")
            for ph in (1, 2, 3):
                P(f"s_cmp_eq_u32 s4, {ph}")
                P(f"s_cselect_b32 s{s_st}, {words[ph] & 0xffffffff}, s{s_st}"); P(f"s_cselect_b32 s{s_pm2}, {words[ph] >> 32}, s{s_pm2}")
        P(f"s_mov_b32 s{s_xb}, s{s_xoff}"); P(f"s_mov_b32 s{s_wb}, s{s_woff}")
        P(f"s_and_b32 s4, s{s_st}, 15")
        P(f"s_lshl_b32 s5, s4, 7"); P(f"s_add_u32 s{s_xoff}, s{s_xb}, s5")
        P(f"s_lshl_b32 s4, s4, 19"); P(f"s_add_u32 s{s_woff}, s{s_wb}, s4")
    elif o.rot:
        P(f"s_mul_i32 s4, s{s_bg}, {o.rot_bg}"); P(f"s_lshr_b32 s5, s{s_idx}, 2"); P(f"s_mul_i32 s5, s5, {o.rot_h}")
        P(f"s_add_u32 s{s_st}, s4, s5"); P(f"s_and_b32 s{s_st}, s{s_st}, {o.rb-1}")
        P(f"s_mov_b32 s{s_xb}, s{s_xoff}"); P(f"s_mov_b32 s{s_wb}, s{s_woff}")
        P(f"s_lshl_b32 s4, s{s_st}, 7"); P(f"s_add_u32 s{s_xoff}, s{s_xb}, s4")
        P(f"s_lshl_b32 s4, s{s_st}, 19"); P(f"s_add_u32 s{s_woff}, s{s_wb}, s4")

def p1_scalar2(P, o):
    P(f"s_lshl_b32 s4, s{s_b}, 5"); P(f"s_add_u32 s4, s4, s{s_h}")
    P(f"s_mul_i32 s{s_kvoff}, s4, 12288")
    P(f"s_lshl_b32 s4, s{s_br}, 3"); P(f"s_lshr_b32 s5, s{s_b}, 1"); P("s_add_u32 s4, s4, s5")
    P(f"s_mul_i32 s4, s4, {o.oblk}"); P(f"s_mul_i32 s{s_ooff}, s{s_h}, 24576"); P(f"s_add_u32 s{s_ooff}, s{s_ooff}, s4")
    P(f"s_and_b32 s5, s{s_b}, 1"); P("s_mul_i32 s5, s5, 3072"); P(f"s_add_u32 s{s_ooff}, s{s_ooff}, s5")
    P(f"s_mov_b32 s{s_kb}, {KV_BASE[0]}")
    for w in (1, 2, 3):
        P(f"s_cmp_eq_u32 s3, {w}"); P(f"s_cselect_b32 s{s_kb}, {KV_BASE[w]}, s{s_kb}")
    P(f"s_mov_b32 s{s_cs}, {f32bits(math.log2(math.e)/math.sqrt(128.0))}")
    P(f"s_lshl_b32 s4, s{s_br}, 4"); P(f"s_lshl_b32 s5, s{s_bg}, 2"); P("s_add_u32 s4, s4, s5")
    P(f"s_lshr_b32 s5, s{s_h}, 3"); P("s_add_u32 s4, s4, s5"); P(f"s_lshl_b32 s{s_sig}, s4, 3")
    P(f"s_mov_b32 s{s_t0}, s{s_kvoff}"); P(f"s_add_u32 s{s_t0+1}, s{s_kvoff}, 4096"); P(f"s_add_u32 s{s_t0+2}, s{s_kvoff}, 8192")
    if o.p2map == 'A':
        P(f"s_and_b32 s4, s{s_hg}, 1"); P("s_lshl_b32 s4, s4, 2"); P(f"s_and_b32 s5, s{s_idx}, 3"); P(f"s_add_u32 s{s_rt}, s4, s5")
        P(f"s_lshr_b32 s4, s{s_hg}, 1"); P("s_lshl_b32 s4, s4, 3"); P(f"s_lshr_b32 s5, s{s_idx}, 2"); P(f"s_add_u32 s{s_ct}, s4, s5")
    else:
        P(f"s_and_b32 s{s_rt}, s{s_idx}, 7")
        if o.cmap == 0:
            P(f"s_lshl_b32 s4, s{s_hg}, 2"); P(f"s_lshr_b32 s5, s{s_idx}, 3"); P(f"s_add_u32 s{s_ct}, s4, s5")
        elif o.cmap == 1:
            P(f"s_lshr_b32 s5, s{s_idx}, 3"); P("s_lshl_b32 s5, s5, 2"); P(f"s_add_u32 s{s_ct}, s{s_hg}, s5")
        else:
            P(f"s_lshr_b32 s5, s{s_idx}, 3"); P(f"s_and_b32 s4, s5, 1"); P(f"s_lshr_b32 s5, s5, 1"); P("s_lshl_b32 s5, s5, 2"); P("s_add_u32 s4, s4, s5")
            P(f"s_and_b32 s5, s{s_hg}, 1"); P("s_lshl_b32 s5, s5, 1"); P("s_add_u32 s4, s4, s5")
            P(f"s_lshr_b32 s5, s{s_hg}, 1"); P("s_lshl_b32 s5, s5, 3"); P(f"s_add_u32 s{s_ct}, s4, s5")
    P.extend(p2_slots789())
    P(f"s_lshl_b32 s4, s{s_br}, 4"); P(f"s_lshr_b32 s5, s{s_rt}, 1"); P("s_lshl_b32 s5, s5, 2"); P("s_add_u32 s4, s4, s5")
    P("s_add_u32 s4, s4, s3"); P(f"s_lshl_b32 s{s_poll}, s4, 3")

def p1_vector_a(P):
    P("v_lshrrev_b32 v1, 3, v0")
    P("v_lshrrev_b32 v2, 4, v0")
    P("v_and_b32 v3, 15, v0")
    P("v_lshrrev_b32 v4, 1, v3"); P("v_and_b32 v5, 1, v0")
    for j in range(4):
        if j in (0, 2):
            P(f"v_or_b32 v6, {(j>>1)<<2}, v2"); P("v_xor_b32 v6, v6, v4"); P("v_lshlrev_b32 v6, 5, v6")
            P("v_lshl_add_u32 v6, v5, 4, v6"); P("v_lshl_add_u32 v6, v2, 13, v6")
        P(f"v_add_u32 v{V_W+j}, {4*j*8192 - j*1024}, v6")
    P("v_and_b32 v4, 7, v0")
    for par in range(2):
        P(f"v_or_b32 v6, {4*par}, v2"); P("v_xor_b32 v6, v6, v4"); P("v_lshlrev_b32 v6, 4, v6")
        P("v_lshl_add_u32 v6, v1, 11, v6")
        for i in range(par, 6, 2):
            imm = (i if i < 4 else i-4)*1024
            P(f"v_add_u32 v{V_X+i}, {8*i*2048-imm}, v6")

def p1_vector_b(P):
    P("v_lshrrev_b32 v4, 2, v3")
    P("v_and_b32 v5, 3, v0")
    P("v_and_b32 v6, 1, v2"); P("v_lshl_or_b32 v6, v6, 2, v4")
    P("v_lshl_add_u32 v7, v2, 3, v4"); P("v_lshlrev_b32 v7, 8, v7"); P("v_lshl_add_u32 v7, v5, 3, v7")
    P(f"v_lshl_add_u32 v{V_TA}, v6, 5, v7")
    for tt in range(1, 8): P(f"v_xor_b32 v{V_TA+tt}, {tt*32}, v{V_TA}")
    P("v_lshrrev_b32 v6, 1, v3"); P("v_xor_b32 v6, v6, v2"); P("v_lshlrev_b32 v6, 4, v6"); P("v_lshl_add_u32 v6, v3, 7, v6")
    P(f"v_add_u32 v{V_XR}, s{s_mx}, v6"); P(f"v_xor_b32 v{V_XR+1}, 64, v{V_XR}")
    P(f"v_lshlrev_b32 v{V_L16}, 4, v0")
    P(f"v_mul_u32_u24 v6, {K_STRIDE}, v2"); P("v_lshl_add_u32 v6, v3, 4, v6"); P(f"v_add_u32 v{V_KW}, s{s_kb}, v6")
    P(f"v_mul_u32_u24 v6, {V_STRIDE}, v2"); P("v_lshl_add_u32 v6, v3, 4, v6"); P(f"v_add_u32 v{V_VW}, s{s_kb}, v6")
    P(f"v_mul_u32_u24 v6, {K_STRIDE}, v3"); P("v_lshl_add_u32 v6, v2, 3, v6"); P(f"v_add_u32 v{V_KR}, s{s_kb}, v6")
    P("v_lshl_add_u32 v6, v2, 2, v4")
    P(f"v_mul_u32_u24 v7, {V_STRIDE}, v6"); P("v_lshl_add_u32 v7, v5, 3, v7"); P(f"v_add_u32 v{V_VR}, s{s_kb}, v7")
    P("v_lshrrev_b32 v7, 1, v6"); P("v_and_b32 v7, 3, v7")
    P("v_lshlrev_b32 v6, 7, v6"); P("v_lshl_add_u32 v6, v5, 3, v6"); P("v_lshl_add_u32 v6, v7, 5, v6")
    P(f"v_mov_b32 v{V2_TA}, v6")
    for tn in range(1, 4): P(f"v_xor_b32 v{V2_TA+tn}, {tn*32}, v{V2_TA}")
    P("v_and_b32 v6, 7, v0"); P("v_lshrrev_b32 v6, 1, v6"); P("v_xor_b32 v6, v6, v2"); P("v_lshlrev_b32 v6, 5, v6")
    P("v_and_b32 v7, 1, v0"); P("v_lshl_add_u32 v6, v7, 4, v6")
    P(f"v_lshl_add_u32 v{V2_WD}, v1, 11, v6")
    for j in range(1, 4): P(f"v_add_u32 v{V2_WD+j}, {j*(16384-1024)}, v{V2_WD}")

def dma_stage(s, o):
    slot = s % 3; L = []; tag = f"dma{s}"
    L.append(mk(f"s_add_u32 m0, s{s_mw}, {LDS_W + slot*16384}"))
    for j in range(4):
        L.append(mk(f"buffer_load_dwordx4 v{V_W+j}, {srd(sWQ)}, s{s_woff} offen offset:{j*1024} {o.nt_w} lds", tag))
    L.append(mk(f"s_add_u32 m0, s{s_mx}, {slot*24576}"))
    for i in range(4):
        L.append(mk(f"buffer_load_dwordx4 v{V_X+i}, {srd(sX)}, s{s_xoff} offen offset:{i*1024} {o.nt_x} lds", tag))
    L.append(mk(f"s_add_u32 m0, s{s_mx}, {slot*24576+4096}"))
    for i in (4, 5):
        L.append(mk(f"buffer_load_dwordx4 v{V_X+i}, {srd(sX)}, s{s_xoff} offen offset:{(i-4)*1024} {o.nt_x} lds", tag))
    if o.perm is not None:
        if s < 15:
            src = s_st if s+1 < 8 else s_pm2
            L.append(mk(f"s_bfe_u32 s4, s{src}, {hex((4 << 16) | (4*((s+1) & 7)))}"))
            L.append(mk(f"s_lshl_b32 s5, s4, 7"))
            L.append(mk(f"s_add_u32 s{s_xoff}, s{s_xb}, s5"))
            L.append(mk(f"s_lshl_b32 s4, s4, 19"))
            L.append(mk(f"s_add_u32 s{s_woff}, s{s_wb}, s4"))
    elif not o.rot:
        L.append(mk(f"s_add_u32 s{s_woff}, s{s_woff}, {64*8192}"))
        L.append(mk(f"s_add_u32 s{s_xoff}, s{s_xoff}, 128"))
    else:
        blk = ((s+1)//o.rb)*o.rb
        L.append(mk(f"s_add_u32 s{s_st}, s{s_st}, 1"))
        L.append(mk(f"s_and_b32 s{s_st}, s{s_st}, {o.rb-1}"))
        L.append(mk(f"s_or_b32 s4, s{s_st}, {blk}"))
        L.append(mk(f"s_lshl_b32 s5, s4, 7"))
        L.append(mk(f"s_add_u32 s{s_xoff}, s{s_xb}, s5"))
        L.append(mk(f"s_lshl_b32 s4, s4, 19"))
        L.append(mk(f"s_add_u32 s{s_woff}, s{s_wb}, s4"))
    return L

def frag_reads(s, ss):
    slot = s % 3; buf = (2*s+ss) & 1; L = []
    for u in range(3):
        L.append(mk(f"ds_read_b128 {ar(fb(buf,u),4)}, v{V_XR+ss} offset:{slot*24576 + u*2048}", f"fr{s}"))
    for t in range(8):
        for j in range(2):
            L.append(mk(f"ds_read_b64_tr_b16 {ar(fa(buf,t)+2*j,2)}, v{V_TA+t} offset:{slot*16384 + ss*8192 + j*1024}", f"fr{s}"))
    return L

def mfma_block(s, ss):
    buf = (2*s+ss) & 1; L = []
    for t in range(8):
        for u in range(3):
            c = "0" if (s == 0 and ss == 0) else vr(acc(t,u),4)
            L.append(mk(f"v_mfma_f32_16x16x32_bf16 {vr(acc(t,u),4)}, {ar(fa(buf,t),4)}, {ar(fb(buf,u),4)}, {c}"))
    return L

def kv_loads(o):
    L = []
    for i in range(24):
        isv = i >= 12; ii = i % 12
        L.append(mk(f"buffer_load_dwordx4 {ar(A_KV+4*i,4)}, v{V_L16}, {srd(sV if isv else sK)}, s{s_t0 + (ii//4)} offen offset:{(ii%4)*1024} {o.nt_kv}", "kv"))
    return L

def split_dma(L):
    n = 0
    for k, i in enumerate(L):
        if i.kind == 'dma':
            n += 1
            if n == 5: return L[:k+1], L[k+1:]
    return L, []

def anchor(L, gaps):
    T = []; j = 0
    for i in L:
        if i.kind in ('dma', 'vload', 'vstore'):
            T.append((gaps[min(j, len(gaps)-1)], i)); j += 1
        else:
            g = gaps[j]-1 if j < len(gaps) else gaps[-1]
            T.append((max(g, 0), i))
    return T

def fill_gaps(mf, timed, per_gap=2):
    out = []; pend = list(timed)
    for k, m in enumerate(mf):
        out.append(m)
        n = 0; j = 0
        while n < per_gap and j < len(pend):
            if pend[j][0] <= k:
                out.append(pend.pop(j)[1]); n += 1
            else: j += 1
    out.extend(x[1] for x in pend)
    return out

s_ws = 14
def p2_tables(o):
    L = []; A = lambda x: L.append(mk(x))
    A(f"s_lshl_b32 s12, s{s_br}, 3"); A(f"s_add_u32 s12, s12, s{s_rt}"); A(f"s_mul_i32 s12, s12, {o.oblk}")
    A(f"s_mul_i32 s13, s3, {8*24576}"); A(f"s_add_u32 s{s_oo}, s12, s13")
    A(f"s_lshl_b32 s{s_wo2}, s3, 21"); A(f"s_lshl_b32 s12, s{s_ct}, 7"); A(f"s_add_u32 s{s_wo2}, s{s_wo2}, s12")
    if o.p2map == 'A':
        A(f"s_and_b32 s12, s{s_idx}, 3"); A(f"s_lshr_b32 s13, s{s_idx}, 2")
    else:
        A(f"s_and_b32 s12, s{s_idx}, 7"); A(f"s_lshr_b32 s13, s{s_idx}, 3")
    A(f"s_mul_i32 s12, s12, {o.p2rot_r}"); A(f"s_mul_i32 s13, s13, {o.p2rot_c}"); A(f"s_add_u32 s12, s12, s13")
    A(f"s_and_b32 s{s_ws}, s12, {o.R-1}")
    A("s_lshl_b32 s12, s3, 12")
    for k, base in enumerate((122880 + 5*4096, 16384, 73728, 32768, 98304, 0, 49152)):
        A(f"s_add_u32 s{S_SLOT[k]}, s12, {base}")
    return L
def p2_slots789():
    tab = [(90112, 94208, 114688), (118784, 65536, 69632), (122880, 126976, 131072), (135168, 139264, 159744)]
    L = []; A = lambda x: L.append(mk(x))
    for k in range(3): A(f"s_mov_b32 s{S_SLOT[7+k]}, {tab[0][k]}")
    for w in (1, 2, 3):
        A(f"s_cmp_eq_u32 s3, {w}")
        for k in range(3): A(f"s_cselect_b32 s{S_SLOT[7+k]}, {tab[w][k]}, s{S_SLOT[7+k]}")
    return L
S_WT = 20
def wtable_words(o):
    out = []
    for seq in o.wperm:
        w = [0]*8
        for l, k in enumerate(seq): w[l//6] |= k << (5*(l % 6))
        out.append(w)
    return out
def load_wtable(P, o):
    if o.wperm is None: return
    n = len(o.wperm)
    if o.w2d:
        if o.p2map == 'A': P(f"s_and_b32 s4, s{s_idx}, 3"); P(f"s_lshr_b32 s5, s{s_idx}, 2")
        else: P(f"s_and_b32 s4, s{s_idx}, 7"); P(f"s_lshr_b32 s5, s{s_idx}, 3")
        if o.w2d == 9: P(f"s_and_b32 s4, s5, {n-1}")
        else: P(f"s_mul_i32 s5, s5, {o.w2d}"); P("s_add_u32 s4, s4, s5"); P(f"s_and_b32 s4, s4, {n-1}")
    else: P(f"s_and_b32 s4, s{s_idx}, {n-1}")
    P("s_lshl_b32 s4, s4, 5")
    P("s_getpc_b64 s[6:7]")
    P("L_pc:")
    P("s_add_u32 s6, s6, L_wtab-L_pc"); P("s_addc_u32 s7, s7, 0")
    P("s_add_u32 s6, s6, s4"); P("s_addc_u32 s7, s7, 0")
    P("s_load_dwordx4 s[20:23], s[6:7], 0"); P("s_load_dwordx2 s[24:25], s[6:7], 16")
def actual_step(l, o, dst):
    if o.wperm is not None:
        return [mk(f"s_bfe_u32 {dst}, s{S_WT + l//6}, {hex((5 << 16) | (5*(l % 6)))}")]
    R = o.R
    L = [mk(f"s_add_u32 {dst}, s{s_ws}, {l & (R-1)}"), mk(f"s_and_b32 {dst}, {dst}, {R-1}")]
    blk = (l // R)*R
    if blk: L.append(mk(f"s_or_b32 {dst}, {dst}, {blk}"))
    return L

def kv_stage(c):
    if c < 3:
        kt = c
        w = [mk(f"ds_write_b128 v{V_KW}, {ar(A_KV+16*c+4*i,4)} offset:{i*4*K_STRIDE}") for i in range(4)]
        r = [mk(f"ds_read_b64 {ar(kf(kt,p)+2*j,2)}, v{V_KR} offset:{64*p + 32*j}") for p in range(4) for j in range(2)]
    else:
        kt = c - 3
        w = [mk(f"ds_write_b128 v{V_VW}, {ar(A_KV+16*c+4*i,4)} offset:{i*4*V_STRIDE}") for i in range(4)]
        r = [mk(f"ds_read_b64_tr_b16 {ar(vf(t)+2*kt,2)}, v{V_VR} offset:{32*t}") for t in range(8)]
    return w, r

def p1_main(P, o):
    kv = kv_loads(o)
    kvq = {}
    if o.kvmode == 'spread': kvq = {c: 2*c+1 for c in range(6)}
    else:
        for q, (a0, a1) in o.kvmode.items():
            for c in range(a0//4, (a1+3)//4): kvq[c] = q
    dsx = {}
    last = -1
    for c in range(6 if not o.vblocks else 3):
        w, r = kv_stage(c)
        nb = max(2*(kvq[c]+2)+1, last+2)
        dsx.setdefault(nb, []).extend(w); dsx.setdefault(nb+1, []).extend(r); last = nb
    assert last+1 <= 31, last
    tb = p2_tables(o)
    sal = {24: tb[:len(tb)//2], 25: tb[len(tb)//2:]}
    early = {27: [0], 28: [1], 29: [2], 30: [3], 31: [4]} if o.n_early == 5 else ({27: [0], 28: [1, 2]} if o.n_early == 3 else {})
    if o.n_early == 5: early = {27: [0, 1], 28: [2], 29: [3], 30: [4]}
    plan = {}
    delayed = getattr(o, 'delayed', ())
    for st in range(2 if o.pro == 1 else 3, 16):
        h1, h2 = split_dma(dma_stage(st, o))
        if st == 2: b1, b2 = (0, 0) if st not in delayed else (0, 1)
        else: b1, b2 = (2*st-5, 2*st-4) if st not in delayed else (2*st-4, 2*st-3)
        assert b2 <= 2*st-2
        plan.setdefault(b1, []).append((st, 0, h1)); plan.setdefault(b2, []).append((st, 1, h2))
    P.wait(vm="dma0"); P("s_barrier")
    stamp(P, o, 1)
    P.extend(frag_reads(0, 0))
    for s in range(16):
        for ss in range(2):
            n = 2*s + ss
            vm = []
            for (st, hf, L) in sorted(plan.get(n, []), key=lambda x: (x[0], x[1])): vm += L
            if ss == 0:
                P.wait(lgkm=0)
                f = frag_reads(s, 1)
                if o.kvmode == 'spread':
                    if s < 12: vm += kv[2*s:2*s+2]
                elif s in o.kvmode: a0, a1 = o.kvmode[s]; vm += kv[a0:a1]
            else:
                if s + 1 <= 15:
                    P.wait(vm=f"dma{s+1}", lgkm=0); P("s_barrier")
                    if o.stage_stamps and (s+1) % 2 == 0: stamp(P, o, (s+1)//2 + 1, True)
                else:
                    P.wait(lgkm=0)
                f = frag_reads(s+1, 0) if s+1 <= 15 else []
            if o.vblocks and n in o.vblocks: a0, a1 = o.vblocks[n]; vm = vm + kv[a0:a1]
            for l in early.get(n, []): vm = vm + wo_dma(l, o)
            nv = sum(1 for i in vm if i.kind in ('dma', 'vload'))
            gaps = [2 + (k*21)//max(nv,1) for k in range(nv)] if nv else [0]
            T = anchor(vm, gaps) + [((k*2)//3, i) for k, i in enumerate(f)] + [(11+k//2, i) for k, i in enumerate(dsx.get(n, []))]
            T += [(12 + k//2, i) for k, i in enumerate(sal.get(n, []))]
            P.extend(fill_gaps(mfma_block(s, ss), T))
    P.wait(lgkm=0)
    P("s_barrier")
    stamp(P, o, 9 if o.stage_stamps else 2, True)

def wo_dma(l, o):
    L = actual_step(l, o, f"s{s_wcur}")
    L += [mk(f"s_lshl_b32 s{s_wcur}, s{s_wcur}, 16"), mk(f"s_add_u32 s{s_wcur}, s{s_wcur}, s{s_wo2}"),
          mk(f"s_mov_b32 m0, s{S_SLOT[l % NSLOT]}")]
    for j in range(4):
        L.append(mk(f"buffer_load_dwordx4 v{V2_WD+j}, {srd(sWO)}, s{s_wcur} offen offset:{j*1024} {o.nt_wo} lds", f"wo{l}"))
    return L
V2_TT = 4
def wo_tr(l):
    L = []
    for tn in range(4):
        L.append(mk(f"v_add_u32 v{V2_TT+tn}, s{S_SLOT[l % NSLOT]}, v{V2_TA+tn}"))
    for tn in range(4):
        for j in range(2):
            L.append(mk(f"ds_read_b64_tr_b16 {rq(woq(l, tn), 2*j, 2)}, v{V2_TT+tn} offset:{j*2048}", f"tr{l}"))
    return L

def softmax_chain(u):
    L = []
    S = [sa(kt, u) + r for kt in range(3) for r in range(4)]
    m = V_M + 4*u; t = m + 1; t2 = m + 2; t3 = m + 3
    A = lambda x: L.append(mk(x))
    A(f"v_max3_f32 v{m}, v{S[0]}, v{S[1]}, v{S[2]}")
    A(f"v_max3_f32 v{t}, v{S[3]}, v{S[4]}, v{S[5]}")
    A(f"v_max3_f32 v{t2}, v{S[6]}, v{S[7]}, v{S[8]}")
    A(f"v_max3_f32 v{t3}, v{S[9]}, v{S[10]}, v{S[11]}")
    A(f"v_max3_f32 v{m}, v{m}, v{t}, v{t2}")
    A(f"v_max_f32 v{m}, v{m}, v{t3}")
    for sw in ("v_permlane16_swap_b32", "v_permlane32_swap_b32"):
        A(f"v_mov_b32 v{t}, v{m}")
        A(f"{sw} v{m}, v{t}")
        A(f"v_max_f32 v{m}, v{m}, v{t}")
    A(f"v_mul_f32 v{m}, s{s_cs}, v{m}")
    for x in S: A(f"v_fma_f32 v{x}, v{x}, s{s_cs}, -v{m}")
    for x in S: A(f"v_exp_f32 v{x}, v{x}")
    A(f"v_add_f32 v{t}, v{S[0]}, v{S[1]}")
    A(f"v_add_f32 v{t2}, v{S[2]}, v{S[3]}")
    A(f"v_add_f32 v{t3}, v{S[4]}, v{S[5]}")
    A(f"v_add_f32 v{m}, v{S[6]}, v{S[7]}")
    A(f"v_add_f32 v{t}, v{t}, v{S[8]}")
    A(f"v_add_f32 v{t2}, v{t2}, v{S[9]}")
    A(f"v_add_f32 v{t3}, v{t3}, v{S[10]}")
    A(f"v_add_f32 v{m}, v{m}, v{S[11]}")
    A(f"v_add_f32 v{t}, v{t}, v{t2}")
    A(f"v_add_f32 v{m}, v{m}, v{t3}")
    A(f"v_add_f32 v{m}, v{m}, v{t}")
    for sw in ("v_permlane16_swap_b32", "v_permlane32_swap_b32"):
        A(f"v_mov_b32 v{t}, v{m}")
        A(f"{sw} v{m}, v{t}")
        A(f"v_add_f32 v{m}, v{m}, v{t}")
    A(f"v_rcp_f32 v{m}, v{m}")
    for x in S: A(f"v_mul_f32 v{x}, v{x}, v{m}")
    for k in range(6):
        A(f"v_cvt_pk_bf16_f32 v{pb(u)+k}, v{S[2*k]}, v{S[2*k+1]}")
    return L

def attention(P, o):
    L = []; A = lambda x, tag=None: L.append(mk(x, tag))
    for p in range(4): A(f"s_add_u32 s{s_t0+p}, s{s_ooff}, {p*6144}")
    for u in range(3):
        for p in range(4):
            for hf in range(2):
                a0 = acc(2*p+hf, u)
                A(f"v_cvt_pk_bf16_f32 v{qb(u,p)+2*hf}, v{a0}, v{a0+1}")
                A(f"v_cvt_pk_bf16_f32 v{qb(u,p)+2*hf+1}, v{a0+2}, v{a0+3}")
    for u in range(3):
        for p in range(4):
            for kt in range(3):
                c = "0" if p == 0 else vr(sa(kt,u),4)
                A(f"v_mfma_f32_16x16x32_bf16 {vr(sa(kt,u),4)}, {ar(kf(kt,p),4)}, {vr(qb(u,p),4)}, {c}")
    for u in range(3): L.extend(softmax_chain(u))
    rel = {}; edges = []
    if o.vblocks:
        assert o.n_attn <= 7 and o.n_pre <= 7 and o.tr_attn == 0
        prev = None
        for c in (3, 4, 5):
            w, r = kv_stage(c)
            for i in w:
                rel[len(L)] = o.vrel + (c-3)*o.vstep; L.append(i)
                if prev:
                    for j in prev: edges.append((j, i, 0))
            for i in r:
                L.append(i)
                for j in w: edges.append((j, i, 20))
            prev = r
    for u in range(3):
        for t in range(8):
            A(f"v_mfma_f32_16x16x32_bf16 {vr(acc(t,u),4)}, {ar(vf(t),4)}, {vr(pb(u),4)}, 0")
        for t in range(8):
            A(f"v_mfma_f32_16x16x16_bf16 {vr(acc(t,u),4)}, {ar(vf(t)+4,2)}, {vr(pb(u)+4,2)}, {vr(acc(t,u),4)}")
    for u in range(3):
        for p in range(4):
            for hf in range(2):
                a0 = acc(2*p+hf, u)
                A(f"v_cvt_pk_bf16_f32 v{qb(u,p)+2*hf}, v{a0}, v{a0+1}")
                A(f"v_cvt_pk_bf16_f32 v{qb(u,p)+2*hf+1}, v{a0+2}, v{a0+3}")
            A(f"buffer_store_dwordx4 {vr(qb(u,p),4)}, v{V_L16}, {srd(sWS)}, s{s_t0+p} offen offset:{u*1024} {o.o_sc}", "ost")
    items = []
    ne = o.n_early
    groups = [('d', l) for l in range(ne, o.n_attn)]
    seq = []
    t_list = list(range(o.tr_attn))
    while groups or t_list:
        if groups: seq.append(groups.pop(0))
        if t_list: seq.append(('t', t_list.pop(0)))
    nslots = len(seq); prev_tr = None
    for k, (kind, l) in enumerate(seq):
        t0 = (k*o.attn_span)//max(nslots, 1)
        if kind == 'd':
            D = wo_dma(l, o); nd = 0
            for i in D:
                rel[len(L)] = t0 + (nd*o.attn_span)//(4*max(nslots,1)) ; L.append(i)
                if i.kind == 'dma': nd += 1
        else:
            wv = mkwait(vm=f"wo{l}", soft=True); rel[len(L)] = t0; L.append(wv)
            T = wo_tr(l)
            for i in T:
                rel[len(L)] = t0; L.append(i)
                if i.kind == 'dsread': edges.append((wv, i, 0))
            if prev_tr is not None:
                for i in T[:4]:
                    for j in prev_tr: edges.append((j, i, 0))
            prev_tr = [i for i in T if i.kind == 'dsread']
            wl = mkwait(lgkm=f"tr{l}", soft=True); rel[len(L)] = t0 + 160; L.append(wl)
            for i in prev_tr: edges.append((i, wl, 100))
            D = wo_dma(l+10, o)
            for i in D:
                rel[len(L)] = t0 + 160; L.append(i)
                if i.kind == 'dma': edges.append((wl, i, 0))
    def sink(i):
        if i.kind == 'vstore' and o.stag:
            m = re.search(r'offset:(\d+)', i.text); u = int(m.group(1))//1024
            return (2-u)*o.stag
        return 0
    order = list_schedule(L, release=rel, verbose=o.verbose, edges=edges, sink_lat=sink, mfma_first=o.mfma_first)
    P.extend(order)
    stamp(P, o, 3)

def gap(P, o):
    issued = set(range(max(o.n_early, o.n_attn))) | {l+10 for l in range(o.tr_attn)}
    def dma(l):
        if l not in issued and l < o.nreg + 10:
            P.extend(wo_dma(l, o)); issued.add(l)
    for l in range(o.n_pre): dma(l)
    P.wait(vm=0 if o.drain else "ost")
    stamp(P, o, 4)
    P("s_barrier").note = 'publish'
    P("s_cmp_lg_u32 s3, 0")
    P("s_cbranch_scc1 L_nosig")
    P("v_mov_b32 v1, 1"); P("v_mov_b32 v2, 0")
    P("s_mov_b64 exec, 1")
    P(f"buffer_atomic_add v1, v2, {srd(sDBG)}, s{s_sig} offen sc1").note = 'slowpath'
    P("s_mov_b64 exec, -1")
    P("L_nosig:")
    P("v_mov_b32 v2, 0")
    for l in range(10): dma(l)
    def poll_load(): P(f"buffer_load_dword v1, v2, {srd(sDBG)}, s{s_poll} offen sc1", "poll")
    for l in range(o.tr_attn, o.nreg):
        if l == o.poll_at: poll_load()
        P.wait(vm=f"wo{l}")
        P.extend(wo_tr(l))
        if l >= 1:
            P.wait(lgkm=f"tr{l-1}")
            dma(l-1+10)
    P.wait(lgkm=f"tr{o.nreg-1}"); dma(o.nreg+9)
    stamp(P, o, 5)
    if o.poll_at >= o.nreg: poll_load()
    P.wait(vm="poll")
    P("v_readfirstlane_b32 s4, v1")
    P("s_cmp_ge_u32 s4, 8")
    P("s_cbranch_scc1 L_polldone")
    P("s_mov_b32 s5, 0")
    P("L_poll:")
    P(f"buffer_load_dword v1, v2, {srd(sDBG)}, s{s_poll} offen sc1").note = 'slowpath'
    i = Inst("s_waitcnt vmcnt(0)"); i.note = 'slowpath'; P.add(i)
    P("v_readfirstlane_b32 s4, v1")
    P("s_add_u32 s5, s5, 1")
    P("s_cmp_gt_u32 s5, 0x40000")
    P("s_cbranch_scc1 L_polldone")
    P("s_cmp_lt_u32 s4, 8")
    P("s_cbranch_scc1 L_poll")
    P("L_polldone:")
    stamp(P, o, 6)

def o_load(i, f, o):
    r = V2_O + (i % o.DO)*24 + f*4
    sreg = s_t0 + (i & 1)*2 + (1 if f >= 4 else 0)
    return mk(f"buffer_load_dwordx4 {vr(r,4)}, v{V_L16}, {srd(sWS)}, s{sreg} offen offset:{(f if f < 4 else f-4)*1024} {o.o_ld}", f"o{i}")
def o_soff(i, o):
    b = s_t0 + (i & 1)*2
    L = actual_step(i, o, f"s{b}")
    L += [mk(f"s_mul_i32 s{b}, s{b}, 6144"), mk(f"s_add_u32 s{b}, s{b}, s{s_oo}"), mk(f"s_add_u32 s{b+1}, s{b}, 4096")]
    return L

def p2_main(P, o):
    DO = o.DO
    for i in range(DO):
        P.extend(o_soff(i, o))
        for f in range(6): P.add(o_load(i, f, o))
    P("v_lshrrev_b32 v1, 3, v0"); P("v_lshrrev_b32 v2, 4, v0"); P("v_and_b32 v3, 15, v0"); P("v_and_b32 v4, 7, v0")
    P(f"s_mul_i32 s4, s3, {RED_WAVE}")
    P(f"v_mul_u32_u24 v5, {RED_STRIDE}, v3"); P("v_lshl_add_u32 v5, v2, 4, v5"); P(f"v_add_u32 v{V2_RW}, s4, v5")
    P(f"s_mul_i32 s4, s3, {24*RED_STRIDE}")
    P(f"v_mul_u32_u24 v5, {RED_STRIDE}, v1"); P("v_lshl_add_u32 v5, v4, 5, v5"); P(f"v_add_u32 v{V2_RR}, s4, v5")
    P(f"v_add_u32 v{V2_RR+1}, {2*RED_WAVE}, v{V2_RR}")
    P("v_lshlrev_b32 v5, 12, v1"); P(f"v_lshl_add_u32 v{V2_OUT}, v4, 4, v5")
    P(f"s_mul_i32 s{s_outoff}, s{s_rt}, {96*4096}"); P(f"s_lshl_b32 s4, s{s_br}, 11"); P(f"s_add_u32 s{s_outoff}, s{s_outoff}, s4")
    P(f"s_lshl_b32 s4, s{s_ct}, 7"); P(f"s_add_u32 s{s_outoff}, s{s_outoff}, s4")
    P(f"s_mul_i32 s4, s3, {24*4096}"); P(f"s_add_u32 s{s_outoff}, s{s_outoff}, s4")
    for i in range(32):
        if i >= o.nreg: P.wait(lgkm=0)
        if i == 31 and o.tail2: P("s_barrier")
        mf = []
        for f in range(6):
            for tn in range(4):
                c = "0" if i == 0 else vr(acc2(tn,f),4)
                mf.append(mk(f"v_mfma_f32_16x16x32_bf16 {vr(acc2(tn,f),4)}, {rq(woq(i, tn), 0, 4)}, {vr(V2_O+(i%DO)*24+f*4,4)}, {c}"))
        if o.p2exp == 'nomfma': mf = [mk(f"v_mov_b32 v{8+k}, v{V2_O+(i%DO)*24+(k//4)*4}") for k in range(24)]
        T = []
        if i+DO < 32: T += [(0, x) for x in o_soff(i+DO, o)]
        if o.nreg <= i+1 < 32:
            T.append((1, mkwait(vm=f"wo{i+1}")))
            T += [(1, x) for x in wo_tr(i+1)]
        if i+DO < 32 and o.p2exp != 'noload': T += [(4*f+3, o_load(i+DO, f, o)) for f in range(6)]
        if o.nreg <= i < 22:
            T += [(5+2*k, x) for k, x in enumerate(wo_dma(i+10, o))]
        if i == 31 and o.tail2:
            T += [(min(4*f+tn+5, 23), mk(f"ds_write_b128 v{V2_RW}, {vr(acc2(tn,f),4)} offset:{f*16*RED_STRIDE + tn*64}")) for f in range(6) for tn in range(4) if 4*f+tn+5 <= 23]
        P.extend(fill_gaps(mf, T))
    stamp(P, o, 7)

def p2_epilogue(P, o):
    if not o.tail2: P("s_barrier")
    for f in range(6):
        for tn in range(4):
            if o.tail2 and 4*f+tn+5 <= 23: continue
            P(f"ds_write_b128 v{V2_RW}, {vr(acc2(tn,f),4)} offset:{f*16*RED_STRIDE + tn*64}")
    P.wait(lgkm=0); P("s_barrier")
    for i in range(3):
        for wv in range(4):
            for h in range(2):
                P(f"ds_read_b128 {vr(V2_R + (i*4+wv)*8 + 4*h, 4)}, v{V2_RR + (wv>>1)} offset:{(wv&1)*RED_WAVE + i*8*RED_STRIDE + 16*h}")
    for i in range(3):
        b = V2_R + i*32
        for e in range(8):
            P(f"v_add_f32 v{b+e}, v{b+e}, v{b+8+e}")
            P(f"v_add_f32 v{b+16+e}, v{b+16+e}, v{b+24+e}")
        for e in range(8): P(f"v_add_f32 v{b+e}, v{b+e}, v{b+16+e}")
        for e in range(4): P(f"v_cvt_pk_bf16_f32 v{b+e}, v{b+2*e}, v{b+2*e+1}")
        P(f"s_add_u32 s4, s{s_outoff}, {i*8*4096}")
        P(f"buffer_store_dwordx4 {vr(b,4)}, v{V2_OUT}, {srd(sOUT)}, s4 offen {o.out_sc}")
    stamp(P, o, 8)

def write_stamps(P, o, n):
    if not o.stamps: return
    P.wait(lgkm=0)
    P("v_mov_b32 v1, 0")
    for j in range(2*n): P(f"v_writelane_b32 v1, s{S_STAMP+j}, {j}")
    P("s_lshl_b32 s4, s2, 2"); P("s_add_u32 s4, s4, s3"); P("s_lshl_b32 s4, s4, 7"); P(f"s_add_u32 s4, s4, {STAMP_OFF}")
    P("v_lshlrev_b32 v2, 2, v0")
    P(f"s_mov_b64 exec, {hex((1<<(2*n))-1)}")
    P(f"buffer_store_dword v1, v2, {srd(sWS)}, s4 offen")
    P("s_mov_b64 exec, -1")

def kernel_text(name, insts):
    return f""".text
.globl {name}
.p2align 8
.type {name},@function
{name}:
{text_of(insts)}
.section .rodata,"a"
.p2align 6
.amdhsa_kernel {name}
  .amdhsa_next_free_vgpr 512
  .amdhsa_next_free_sgpr 102
  .amdhsa_accum_offset 256
  .amdhsa_group_segment_fixed_size 0
  .amdhsa_kernarg_size 104
  .amdhsa_user_sgpr_count 2
  .amdhsa_user_sgpr_kernarg_segment_ptr 1
  .amdhsa_system_sgpr_workgroup_id_x 1
.end_amdhsa_kernel
.text
"""

def gen_kernel(name, o):
    NREG[0] = o.nreg; ARCH0[0] = V2_O + 24*o.DO
    assert ARCH0[0] + 16*(o.nreg-16) <= 256
    P = Prog()
    prologue(P, o)
    p1_scalar(P, o)
    p1_vector_a(P)
    build_srds(P)
    if o.pro_stamps: stamp(P, o, 3, True)
    for s in range(3 if o.pro == 0 else 1):
        P.extend(dma_stage(s, o))
        if o.pro_stamps: stamp(P, o, 4+s, True)
    build_srds2(P)
    p1_scalar2(P, o)
    load_wtable(P, o)
    p1_vector_b(P)
    if o.pro >= 1: P.extend(dma_stage(1, o))
    if o.pro == 2: P.extend(dma_stage(2, o))
    if o.touch:
        P("v_mov_b32 v7, 0")
        P("s_lshl_b32 s4, s3, 21")
        P(f"buffer_load_dword v254, v7, {srd(sWO)}, s4 offen", "touch")
        P(f"s_mul_i32 s4, s{s_rt}, {96*4096}")
        P(f"buffer_load_dword v254, v7, {srd(sOUT)}, s4 offen", "touch")
        if o.touch >= 2:
            P(f"buffer_load_dword v254, v7, {srd(sK)}, s{s_kvoff} offen", "touch")
            P(f"buffer_load_dword v254, v7, {srd(sV)}, s{s_kvoff} offen", "touch")
        if o.touch >= 3:
            assert o.oblk == 1 << 20
            P(f"s_and_b32 s4, s{s_ooff}, 0xfff00000"); P("s_add_u32 s4, s4, 0xc0000")
            P(f"buffer_load_dword v254, v7, {srd(sWS)}, s4 offen", "touch")
            P(f"s_lshl_b32 s4, s{s_br}, 3"); P(f"s_add_u32 s4, s4, s{s_rt}"); P("s_lshl_b32 s4, s4, 20"); P("s_add_u32 s4, s4, 0xc0000")
            P(f"buffer_load_dword v254, v7, {srd(sWS)}, s4 offen", "touch")
    if o.pro_stamps: stamp(P, o, 7, True)
    if o.upto >= 1:
        if isinstance(o.kvmode, list):
            P(f"s_mul_i32 s4, s{s_bg}, {o.phi[0]}"); P(f"s_lshr_b32 s5, s{s_idx}, 2"); P(f"s_mul_i32 s5, s5, {o.phi[1]}")
            P("s_add_u32 s4, s4, s5"); P("s_and_b32 s4, s4, 3")
            modes = o.kvmode
            for ph in (1, 2, 3):
                P(f"s_cmp_eq_u32 s4, {ph}"); P(f"s_cbranch_scc1 L_var{ph}")
            for ph in range(4):
                if ph: P(f"L_var{ph}:")
                o.kvmode = modes[ph]
                o.delayed = o.delay_sets[ph] if o.delay_sets else ()
                Q = Prog(); p1_main(Q, o)
                sub = resolve_waits(Q.insts + [mkwait(vm=None, lgkm=None)])
                P.add(Inst(".variant_begin")); P.extend(Q.insts); P.add(Inst(".variant_end"))
                if ph < 3: P("s_branch L_varjoin")
            P("L_varjoin:")
            o.kvmode = modes
        else:
            p1_main(P, o)
    if o.upto >= 2: attention(P, o)
    if o.upto >= 3: gap(P, o)
    if o.upto >= 4:
        p2_main(P, o)
        p2_epilogue(P, o)
    if o.endwait or o.stamps: P.wait(vm=0)
    stamp(P, o, 9)
    write_stamps(P, o, 10)
    if o.endwait or o.stamps: P.wait(vm=0)
    P("L_exit:")
    P("s_endpgm")
    if o.wperm is not None:
        P(".p2align 6"); P("L_wtab:")
        for w in wtable_words(o): P(".long " + ", ".join(hex(x) for x in w))
    insts, nops = finalize(P)
    for ta in (False, True):
        for ts in (False, True):
            bad = verify_counters(insts, ta, ts)
            assert not bad, (name, ta, ts, bad[:5])
    txt = kernel_text(name, insts)
    txt = txt.replace(".variant_begin", "").replace(".variant_end", "")
    for lab in ("L_exit", "L_nosig", "L_polldone", "L_poll", "L_var1", "L_var2", "L_var3", "L_varjoin", "L_pc", "L_wtab"):
        txt = re.sub(r'\b' + lab + r'\b', lab + "_" + name[-24:], txt)
    return txt, len(insts), nops

def pioneer_perm(L, period=4, n=16):
    out = []
    for phi in range(period):
        left = list(range(n)); seq = []
        for t in range(n):
            k = t + L if (t % period == phi and t + L in left) else left[0]
            left.remove(k); seq.append(k)
        out.append(seq)
    return out

HEADER = """; concat_heads( MHA block , GQA block ):  out[:, :, 0:1024] = branch A, out[:, :, 1024:2048] = branch B,
"""
def final_file(o):
    t, n, _ = gen_kernel(KNAME, o)
    return HEADER + "; @launch grid=(256,1,1) block=(256,1,1) lds=163840\n" + '.amdgcn_target "amdgcn-amd-amdhsa--gfx950"\n' + t

def build(V, fn="fx"):
    from hipmini import metadata, assemble
    s = '.amdgcn_target "amdgcn-amd-amdhsa--gfx950"\n'; ks = []
    for n, o in V.items():
        t, ni, nops = gen_kernel(n, o); s += t; ks.append((n, 102, 512, 256))
    s += metadata(ks, 13)
    open(f"work/{fn}.s", "w").write(s); assemble(f"work/{fn}.s", f"work/{fn}.co"); print(" ".join(V), ni, nops)

if __name__ == "__main__":
    V = {}
    def k6(*st): return {q:(4*i,4*i+4) for i, q in enumerate(st)}
    base = dict(stamps=True, nt_kv="nt", tail2=True, stag=300, out_sc="sc1", n_early=5, n_attn=5, n_pre=5,
            perm=pioneer_perm(3), hmap=1, mfma_first=True, cmap=1, pro=1, kvmode=k6(2,4,6,8,10,12), p2map='B', R=8, p2rot_c=0, p2rot_r=1)
    for clk, nm in (("s_memrealtime", "t"), ("s_memtime", "c")):
        V[f"{nm}_full"] = Opt(**base, nreg=20, DO=2, poll_at=19, clk=clk)
        V[f"{nm}_nomfma"] = Opt(**base, nreg=20, DO=2, poll_at=19, clk=clk, p2exp='nomfma')
        V[f"{nm}_noload"] = Opt(**base, nreg=20, DO=2, poll_at=19, clk=clk, p2exp='noload')
        V[f"{nm}_D3"] = Opt(**base, nreg=18, DO=3, poll_at=17, clk=clk)
    build(V)
```

```python
import sys, math, re, struct
from asmgen import *

KNAME = "concat_heads__mha_block_cached__gqa_block_cached__near_ridge_kernel"
STAMP_OFF = 16 << 20

sX, sWQ, sK, sV, sWS, sWO, sOUT, sDBG = 32, 36, 40, 44, 48, 52, 56, 60
S_TO, S_TW = 32, 40
s_br, s_h, s_b, s_bg, s_hg, s_idx = 26, 27, 28, 29, 30, 31
s_xoff, s_woff, s_kvoff, s_ooff, s_mx, s_mw = 64, 65, 66, 67, 68, 69
s_t0 = 70
s_kb = 74; s_m2 = 75; s_cs = 76
s_st, s_xb, s_wb = 77, 78, 79
s_pm2 = 75
s_wcur = 15; s_outoff = 78; s_oo = 8; s_wo2 = 9
S_SLOT = [40, 41, 42, 43, 66, 74, 17, 10, 11, 16]
s_rt, s_ct = 18, 19
s_sig, s_poll = 100, 101
S_STAMP = 80

def srd(n): return f"s[{n}:{n+3}]"
def vr(n, c=1): return f"v{n}" if c == 1 else f"v[{n}:{n+c-1}]"
def ar(n, c=1): return f"a{n}" if c == 1 else f"a[{n}:{n+c-1}]"
def f32bits(x): return hex(struct.unpack('<I', struct.pack('<f', x))[0])

class Opt:
    def __init__(self, **kw):
        self.nt_x = ""; self.nt_w = ""; self.nt_kv = ""; self.nt_wo = ""; self.o_sc = "sc1"; self.o_ld = "sc1"; self.out_sc = ""
        self.stamps = False; self.clk = 's_memrealtime'; self.stage_stamps = False
        self.rot = False; self.rb = 8; self.rot_bg = 2; self.rot_h = 1; self.kvmode = 'spread'
        self.p2map = 'A'; self.p2rot_c = 1; self.p2rot_r = 2
        self.n_attn = 10
        self.attn_span = 2600
        self.DO = 3; self.n_pre = 10; self.upto = 9; self.ctouch = False; self.p2exp = ''; self.vrel = 100; self.vstep = 150; self.vblocks = None; self.delay_sets = None; self.oblk = 32*24576; self.pro = 0; self.pro_stamps = False; self.w2d = 0; self.xor = 0; self.drain = True; self.perm_ws = False; self.hmap = 0; self.cmap = 0; self.touch = False; self.pk = False; self.mfma_first = False; self.nreg = 16; self.tail2 = False; self.stag = 0; self.endwait = True; self.wperm = None; self.perm = None; self.phi = (1, 3); self.R = 8; self.n_mid = 0; self.n_early = 5; self.tr_attn = 0; self.poll_at = 16
        self.verbose = False
        self.__dict__.update(kw)

def stamp(P, o, i, stage=False):
    if o.stamps and (stage or not o.stage_stamps or i <= 1): P(f"{o.clk} s[{S_STAMP+2*i}:{S_STAMP+2*i+1}]")

ACC = 8
def acc(t, u): return ACC + (t*3 + u)*4
V_X, V_W, V_TA, V_XR, V_L16 = 104, 110, 114, 122, 124
V_KW, V_VW, V_KR, V_VR = 125, 126, 127, 128
V2_WD, V2_TA = 130, 134
QB = 140
def qb(u, p): return QB + (u*4 + p)*4
SA = 188
def sa(kt, u): return SA + (u*3 + kt)*4
PB = 224
def pb(u): return PB + u*6
V_M = 242
A_KV = 0
def kf(kt, p): return A_KV + (kt*4 + p)*4
def vf(t): return 184 + t*6
A_FA, A_FB = 96, 160
def fa(buf, t): return A_FA + buf*32 + t*4
def fb(buf, u): return A_FB + buf*12 + u*4
LDS_W, LDS_X = 0, 49152
K_STRIDE, V_STRIDE = 272, 288
KV_BASE = [122880 + w*4608 for w in range(4)]
def acc2(tn, f): return 8 + (f*4 + tn)*4
V2_O = 140
V2_RW, V2_RR, V2_OUT = 104, 105, 107
V2_R = 132
_Q1 = list(range(48, 184, 4)) + list(range(232, 256, 4))
_Q2 = list(range(0, 48, 4)) + list(range(184, 232, 4))
NREG = [16]; ARCH0 = [188]
def woq(l, tn):
    if l < 10: return ('a', _Q1[4*l + tn])
    if l < 16: return ('a', _Q2[4*(l-10) + tn])
    if l < NREG[0]: return ('v', ARCH0[0] + 16*(l-16) + 4*tn)
    return ('a', _Q1[4*(l & 1) + tn])
def rq(q, off, n): return f"{q[0]}[{q[1]+off}:{q[1]+off+n-1}]"
NSLOT = 10
RED_STRIDE = 272; RED_WAVE = 96*272

def prologue(P, o):
    P("s_cmp_ge_u32 s2, 0x100")
    P("s_cbranch_scc1 L_exit")
    if o.xor: P(f"s_xor_b32 s2, s2, {o.xor}")
    stamp(P, o, 0)
    P("v_lshrrev_b32 v1, 6, v0")
    P("s_and_b32 s4, s2, 7")
    P("v_readfirstlane_b32 s3, v1")
    P(f"s_lshr_b32 s{s_br}, s4, 2")
    P(f"s_and_b32 s{s_hg}, s4, 3")
    P(f"s_lshr_b32 s{s_idx}, s2, 3")
    P(f"s_mul_i32 s5, s{s_br}, 40")
    P("s_add_u32 s6, s0, s5")
    P("s_addc_u32 s7, s1, 0")
    P("s_load_dwordx8 s[8:15], s[6:7], 0")
    P("s_load_dwordx2 s[16:17], s[6:7], 32")
    P("s_load_dwordx4 s[20:23], s[0:1], 80")
    P("s_load_dwordx2 s[24:25], s[0:1], 96")
    P("v_and_b32 v0, 63, v0")

def build_srds(P):
    P.wait(lgkm=0)
    def one(n, lo, size):
        P(f"s_mov_b32 s{n}, s{lo}"); P(f"s_and_b32 s{n+1}, s{lo+1}, 0xffff")
        P(f"s_mov_b32 s{n+2}, {size}"); P(f"s_mov_b32 s{n+3}, 0x20000")
    one(sWQ, 14, 1024*4096*2); one(sX, 8, 16*48*1024*2)

def build_srds2(P):
    def one(n, lo, size):
        P(f"s_mov_b32 s{n}, s{lo}"); P(f"s_and_b32 s{n+1}, s{lo+1}, 0xffff")
        P(f"s_mov_b32 s{n+2}, {size}"); P(f"s_mov_b32 s{n+3}, 0x20000")
    one(sK, 10, 16*32*48*128*2); one(sV, 12, 16*32*48*128*2)
    one(sWO, 16, 4096*1024*2); one(sOUT, 20, 16*48*2048*2)
    one(sDBG, 22, 256); one(sWS, 24, 268435456)

def p1_scalar(P, o):
    P(f"s_and_b32 s{s_bg}, s{s_idx}, 3")
    P(f"s_lshr_b32 s4, s{s_idx}, 2")
    if o.hmap == 0:
        P(f"s_lshl_b32 s{s_h}, s{s_hg}, 3")
        P(f"s_add_u32 s{s_h}, s{s_h}, s4")
    else:
        P(f"s_lshl_b32 s{s_h}, s4, 2")
        P(f"s_add_u32 s{s_h}, s{s_h}, s{s_hg}")
    P(f"s_lshl_b32 s{s_b}, s{s_bg}, 2")
    P(f"s_add_u32 s{s_b}, s{s_b}, s3")
    P(f"s_mul_i32 s{s_xoff}, s{s_b}, {48*2048}")
    P(f"s_lshl_b32 s4, s3, 17")
    P(f"s_lshl_b32 s{s_woff}, s{s_h}, 8")
    P(f"s_add_u32 s{s_woff}, s{s_woff}, s4")
    P(f"s_mul_i32 s{s_mx}, s3, 6144"); P(f"s_add_u32 s{s_mx}, s{s_mx}, {LDS_X}")
    P(f"s_lshl_b32 s{s_mw}, s3, 12")
    if o.perm is not None:
        P(f"s_mul_i32 s4, s{s_bg}, {o.phi[0]}"); P(f"s_lshr_b32 s5, s{s_idx}, 2"); P(f"s_mul_i32 s5, s5, {o.phi[1]}")
        P("s_add_u32 s4, s4, s5"); P("s_and_b32 s4, s4, 3")
        if o.perm_ws:
            P.wait(lgkm=0)
            P("s_lshl_b32 s4, s4, 3"); P(f"s_add_u32 s4, s4, {20 << 20}")
            P("s_add_u32 s6, s24, s4"); P("s_addc_u32 s7, s25, 0")
            P("s_load_dwordx2 s[18:19], s[6:7], 0")
            P.wait(lgkm=0)
            P(f"s_mov_b32 s{s_st}, s18"); P(f"s_mov_b32 s{s_pm2}, s19")
        else:
            words = [sum(k << (4*i) for i, k in enumerate(p)) for p in o.perm]
            P(f"s_mov_b32 s{s_st}, {words[0] & 0xffffffff}"); P(f"s_mov_b32 s{s_pm2}, {words[0] >> 32}")
            for ph in (1, 2, 3):
                P(f"s_cmp_eq_u32 s4, {ph}")
                P(f"s_cselect_b32 s{s_st}, {words[ph] & 0xffffffff}, s{s_st}"); P(f"s_cselect_b32 s{s_pm2}, {words[ph] >> 32}, s{s_pm2}")
        P(f"s_mov_b32 s{s_xb}, s{s_xoff}"); P(f"s_mov_b32 s{s_wb}, s{s_woff}")
        P(f"s_and_b32 s4, s{s_st}, 15")
        P(f"s_lshl_b32 s5, s4, 7"); P(f"s_add_u32 s{s_xoff}, s{s_xb}, s5")
        P(f"s_lshl_b32 s4, s4, 19"); P(f"s_add_u32 s{s_woff}, s{s_wb}, s4")
    elif o.rot:
        P(f"s_mul_i32 s4, s{s_bg}, {o.rot_bg}"); P(f"s_lshr_b32 s5, s{s_idx}, 2"); P(f"s_mul_i32 s5, s5, {o.rot_h}")
        P(f"s_add_u32 s{s_st}, s4, s5"); P(f"s_and_b32 s{s_st}, s{s_st}, {o.rb-1}")
        P(f"s_mov_b32 s{s_xb}, s{s_xoff}"); P(f"s_mov_b32 s{s_wb}, s{s_woff}")
        P(f"s_lshl_b32 s4, s{s_st}, 7"); P(f"s_add_u32 s{s_xoff}, s{s_xb}, s4")
        P(f"s_lshl_b32 s4, s{s_st}, 19"); P(f"s_add_u32 s{s_woff}, s{s_wb}, s4")

def p1_scalar2(P, o):
    P(f"s_lshl_b32 s4, s{s_b}, 5"); P(f"s_add_u32 s4, s4, s{s_h}")
    P(f"s_mul_i32 s{s_kvoff}, s4, 12288")
    P(f"s_lshl_b32 s4, s{s_br}, 3"); P(f"s_lshr_b32 s5, s{s_b}, 1"); P("s_add_u32 s4, s4, s5")
    P(f"s_mul_i32 s4, s4, {o.oblk}"); P(f"s_mul_i32 s{s_ooff}, s{s_h}, 24576"); P(f"s_add_u32 s{s_ooff}, s{s_ooff}, s4")
    P(f"s_and_b32 s5, s{s_b}, 1"); P("s_mul_i32 s5, s5, 3072"); P(f"s_add_u32 s{s_ooff}, s{s_ooff}, s5")
    P(f"s_mov_b32 s{s_kb}, {KV_BASE[0]}")
    for w in (1, 2, 3):
        P(f"s_cmp_eq_u32 s3, {w}"); P(f"s_cselect_b32 s{s_kb}, {KV_BASE[w]}, s{s_kb}")
    P(f"s_mov_b32 s{s_cs}, {f32bits(math.log2(math.e)/math.sqrt(128.0))}")
    P(f"s_lshl_b32 s4, s{s_br}, 4"); P(f"s_lshl_b32 s5, s{s_bg}, 2"); P("s_add_u32 s4, s4, s5")
    P(f"s_lshr_b32 s5, s{s_h}, 3"); P("s_add_u32 s4, s4, s5"); P(f"s_lshl_b32 s{s_sig}, s4, 3")
    P(f"s_mov_b32 s{s_t0}, s{s_kvoff}"); P(f"s_add_u32 s{s_t0+1}, s{s_kvoff}, 4096"); P(f"s_add_u32 s{s_t0+2}, s{s_kvoff}, 8192")
    if o.p2map == 'A':
        P(f"s_and_b32 s4, s{s_hg}, 1"); P("s_lshl_b32 s4, s4, 2"); P(f"s_and_b32 s5, s{s_idx}, 3"); P(f"s_add_u32 s{s_rt}, s4, s5")
        P(f"s_lshr_b32 s4, s{s_hg}, 1"); P("s_lshl_b32 s4, s4, 3"); P(f"s_lshr_b32 s5, s{s_idx}, 2"); P(f"s_add_u32 s{s_ct}, s4, s5")
    else:
        P(f"s_and_b32 s{s_rt}, s{s_idx}, 7")
        if o.cmap == 0:
            P(f"s_lshl_b32 s4, s{s_hg}, 2"); P(f"s_lshr_b32 s5, s{s_idx}, 3"); P(f"s_add_u32 s{s_ct}, s4, s5")
        elif o.cmap == 1:
            P(f"s_lshr_b32 s5, s{s_idx}, 3"); P("s_lshl_b32 s5, s5, 2"); P(f"s_add_u32 s{s_ct}, s{s_hg}, s5")
        else:
            P(f"s_lshr_b32 s5, s{s_idx}, 3"); P(f"s_and_b32 s4, s5, 1"); P(f"s_lshr_b32 s5, s5, 1"); P("s_lshl_b32 s5, s5, 2"); P("s_add_u32 s4, s4, s5")
            P(f"s_and_b32 s5, s{s_hg}, 1"); P("s_lshl_b32 s5, s5, 1"); P("s_add_u32 s4, s4, s5")
            P(f"s_lshr_b32 s5, s{s_hg}, 1"); P("s_lshl_b32 s5, s5, 3"); P(f"s_add_u32 s{s_ct}, s4, s5")
    P.extend(p2_slots789())
    P(f"s_lshl_b32 s4, s{s_br}, 4"); P(f"s_lshr_b32 s5, s{s_rt}, 1"); P("s_lshl_b32 s5, s5, 2"); P("s_add_u32 s4, s4, s5")
    P("s_add_u32 s4, s4, s3"); P(f"s_lshl_b32 s{s_poll}, s4, 3")

def p1_vector_a(P):
    P("v_lshrrev_b32 v1, 3, v0")
    P("v_lshrrev_b32 v2, 4, v0")
    P("v_and_b32 v3, 15, v0")
    P("v_lshrrev_b32 v4, 1, v3"); P("v_and_b32 v5, 1, v0")
    for j in range(4):
        if j in (0, 2):
            P(f"v_or_b32 v6, {(j>>1)<<2}, v2"); P("v_xor_b32 v6, v6, v4"); P("v_lshlrev_b32 v6, 5, v6")
            P("v_lshl_add_u32 v6, v5, 4, v6"); P("v_lshl_add_u32 v6, v2, 13, v6")
        P(f"v_add_u32 v{V_W+j}, {4*j*8192 - j*1024}, v6")
    P("v_and_b32 v4, 7, v0")
    for par in range(2):
        P(f"v_or_b32 v6, {4*par}, v2"); P("v_xor_b32 v6, v6, v4"); P("v_lshlrev_b32 v6, 4, v6")
        P("v_lshl_add_u32 v6, v1, 11, v6")
        for i in range(par, 6, 2):
            imm = (i if i < 4 else i-4)*1024
            P(f"v_add_u32 v{V_X+i}, {8*i*2048-imm}, v6")

def p1_vector_b(P):
    P("v_lshrrev_b32 v4, 2, v3")
    P("v_and_b32 v5, 3, v0")
    P("v_and_b32 v6, 1, v2"); P("v_lshl_or_b32 v6, v6, 2, v4")
    P("v_lshl_add_u32 v7, v2, 3, v4"); P("v_lshlrev_b32 v7, 8, v7"); P("v_lshl_add_u32 v7, v5, 3, v7")
    P(f"v_lshl_add_u32 v{V_TA}, v6, 5, v7")
    for tt in range(1, 8): P(f"v_xor_b32 v{V_TA+tt}, {tt*32}, v{V_TA}")
    P("v_lshrrev_b32 v6, 1, v3"); P("v_xor_b32 v6, v6, v2"); P("v_lshlrev_b32 v6, 4, v6"); P("v_lshl_add_u32 v6, v3, 7, v6")
    P(f"v_add_u32 v{V_XR}, s{s_mx}, v6"); P(f"v_xor_b32 v{V_XR+1}, 64, v{V_XR}")
    P(f"v_lshlrev_b32 v{V_L16}, 4, v0")
    P(f"v_mul_u32_u24 v6, {K_STRIDE}, v2"); P("v_lshl_add_u32 v6, v3, 4, v6"); P(f"v_add_u32 v{V_KW}, s{s_kb}, v6")
    P(f"v_mul_u32_u24 v6, {V_STRIDE}, v2"); P("v_lshl_add_u32 v6, v3, 4, v6"); P(f"v_add_u32 v{V_VW}, s{s_kb}, v6")
    P(f"v_mul_u32_u24 v6, {K_STRIDE}, v3"); P("v_lshl_add_u32 v6, v2, 3, v6"); P(f"v_add_u32 v{V_KR}, s{s_kb}, v6")
    P("v_lshl_add_u32 v6, v2, 2, v4")
    P(f"v_mul_u32_u24 v7, {V_STRIDE}, v6"); P("v_lshl_add_u32 v7, v5, 3, v7"); P(f"v_add_u32 v{V_VR}, s{s_kb}, v7")
    P("v_lshrrev_b32 v7, 1, v6"); P("v_and_b32 v7, 3, v7")
    P("v_lshlrev_b32 v6, 7, v6"); P("v_lshl_add_u32 v6, v5, 3, v6"); P("v_lshl_add_u32 v6, v7, 5, v6")
    P(f"v_mov_b32 v{V2_TA}, v6")
    for tn in range(1, 4): P(f"v_xor_b32 v{V2_TA+tn}, {tn*32}, v{V2_TA}")
    P("v_and_b32 v6, 7, v0"); P("v_lshrrev_b32 v6, 1, v6"); P("v_xor_b32 v6, v6, v2"); P("v_lshlrev_b32 v6, 5, v6")
    P("v_and_b32 v7, 1, v0"); P("v_lshl_add_u32 v6, v7, 4, v6")
    P(f"v_lshl_add_u32 v{V2_WD}, v1, 11, v6")
    for j in range(1, 4): P(f"v_add_u32 v{V2_WD+j}, {j*(16384-1024)}, v{V2_WD}")

def dma_stage(s, o):
    slot = s % 3; L = []; tag = f"dma{s}"
    L.append(mk(f"s_add_u32 m0, s{s_mw}, {LDS_W + slot*16384}"))
    for j in range(4):
        L.append(mk(f"buffer_load_dwordx4 v{V_W+j}, {srd(sWQ)}, s{s_woff} offen offset:{j*1024} {o.nt_w} lds", tag))
    L.append(mk(f"s_add_u32 m0, s{s_mx}, {slot*24576}"))
    for i in range(4):
        L.append(mk(f"buffer_load_dwordx4 v{V_X+i}, {srd(sX)}, s{s_xoff} offen offset:{i*1024} {o.nt_x} lds", tag))
    L.append(mk(f"s_add_u32 m0, s{s_mx}, {slot*24576+4096}"))
    for i in (4, 5):
        L.append(mk(f"buffer_load_dwordx4 v{V_X+i}, {srd(sX)}, s{s_xoff} offen offset:{(i-4)*1024} {o.nt_x} lds", tag))
    if o.perm is not None:
        if s < 15:
            src = s_st if s+1 < 8 else s_pm2
            L.append(mk(f"s_bfe_u32 s4, s{src}, {hex((4 << 16) | (4*((s+1) & 7)))}"))
            L.append(mk(f"s_lshl_b32 s5, s4, 7"))
            L.append(mk(f"s_add_u32 s{s_xoff}, s{s_xb}, s5"))
            L.append(mk(f"s_lshl_b32 s4, s4, 19"))
            L.append(mk(f"s_add_u32 s{s_woff}, s{s_wb}, s4"))
    elif not o.rot:
        L.append(mk(f"s_add_u32 s{s_woff}, s{s_woff}, {64*8192}"))
        L.append(mk(f"s_add_u32 s{s_xoff}, s{s_xoff}, 128"))
    else:
        blk = ((s+1)//o.rb)*o.rb
        L.append(mk(f"s_add_u32 s{s_st}, s{s_st}, 1"))
        L.append(mk(f"s_and_b32 s{s_st}, s{s_st}, {o.rb-1}"))
        L.append(mk(f"s_or_b32 s4, s{s_st}, {blk}"))
        L.append(mk(f"s_lshl_b32 s5, s4, 7"))
        L.append(mk(f"s_add_u32 s{s_xoff}, s{s_xb}, s5"))
        L.append(mk(f"s_lshl_b32 s4, s4, 19"))
        L.append(mk(f"s_add_u32 s{s_woff}, s{s_wb}, s4"))
    return L

def frag_reads(s, ss):
    slot = s % 3; buf = (2*s+ss) & 1; L = []
    for u in range(3):
        L.append(mk(f"ds_read_b128 {ar(fb(buf,u),4)}, v{V_XR+ss} offset:{slot*24576 + u*2048}", f"fr{s}"))
    for t in range(8):
        for j in range(2):
            L.append(mk(f"ds_read_b64_tr_b16 {ar(fa(buf,t)+2*j,2)}, v{V_TA+t} offset:{slot*16384 + ss*8192 + j*1024}", f"fr{s}"))
    return L

def mfma_block(s, ss):
    buf = (2*s+ss) & 1; L = []
    for t in range(8):
        for u in range(3):
            c = "0" if (s == 0 and ss == 0) else vr(acc(t,u),4)
            L.append(mk(f"v_mfma_f32_16x16x32_bf16 {vr(acc(t,u),4)}, {ar(fa(buf,t),4)}, {ar(fb(buf,u),4)}, {c}"))
    return L

def kv_loads(o):
    L = []
    for i in range(24):
        isv = i >= 12; ii = i % 12
        L.append(mk(f"buffer_load_dwordx4 {ar(A_KV+4*i,4)}, v{V_L16}, {srd(sV if isv else sK)}, s{s_t0 + (ii//4)} offen offset:{(ii%4)*1024} {o.nt_kv}", "kv"))
    return L

def split_dma(L):
    n = 0
    for k, i in enumerate(L):
        if i.kind == 'dma':
            n += 1
            if n == 5: return L[:k+1], L[k+1:]
    return L, []

def anchor(L, gaps):
    T = []; j = 0
    for i in L:
        if i.kind in ('dma', 'vload', 'vstore'):
            T.append((gaps[min(j, len(gaps)-1)], i)); j += 1
        else:
            g = gaps[j]-1 if j < len(gaps) else gaps[-1]
            T.append((max(g, 0), i))
    return T

def fill_gaps(mf, timed, per_gap=2):
    out = []; pend = list(timed)
    for k, m in enumerate(mf):
        out.append(m)
        n = 0; j = 0
        while n < per_gap and j < len(pend):
            if pend[j][0] <= k:
                out.append(pend.pop(j)[1]); n += 1
            else: j += 1
    out.extend(x[1] for x in pend)
    return out

s_ws = 14
def p2_tables(o):
    L = []; A = lambda x: L.append(mk(x))
    A(f"s_lshl_b32 s12, s{s_br}, 3"); A(f"s_add_u32 s12, s12, s{s_rt}"); A(f"s_mul_i32 s12, s12, {o.oblk}")
    A(f"s_mul_i32 s13, s3, {8*24576}"); A(f"s_add_u32 s{s_oo}, s12, s13")
    A(f"s_lshl_b32 s{s_wo2}, s3, 21"); A(f"s_lshl_b32 s12, s{s_ct}, 7"); A(f"s_add_u32 s{s_wo2}, s{s_wo2}, s12")
    if o.p2map == 'A':
        A(f"s_and_b32 s12, s{s_idx}, 3"); A(f"s_lshr_b32 s13, s{s_idx}, 2")
    else:
        A(f"s_and_b32 s12, s{s_idx}, 7"); A(f"s_lshr_b32 s13, s{s_idx}, 3")
    A(f"s_mul_i32 s12, s12, {o.p2rot_r}"); A(f"s_mul_i32 s13, s13, {o.p2rot_c}"); A(f"s_add_u32 s12, s12, s13")
    A(f"s_and_b32 s{s_ws}, s12, {o.R-1}")
    A("s_lshl_b32 s12, s3, 12")
    for k, base in enumerate((122880 + 5*4096, 16384, 73728, 32768, 98304, 0, 49152)):
        A(f"s_add_u32 s{S_SLOT[k]}, s12, {base}")
    return L
def p2_slots789():
    tab = [(90112, 94208, 114688), (118784, 65536, 69632), (122880, 126976, 131072), (135168, 139264, 159744)]
    L = []; A = lambda x: L.append(mk(x))
    for k in range(3): A(f"s_mov_b32 s{S_SLOT[7+k]}, {tab[0][k]}")
    for w in (1, 2, 3):
        A(f"s_cmp_eq_u32 s3, {w}")
        for k in range(3): A(f"s_cselect_b32 s{S_SLOT[7+k]}, {tab[w][k]}, s{S_SLOT[7+k]}")
    return L
S_WT = 20
def wtable_words(o):
    out = []
    for seq in o.wperm:
        w = [0]*8
        for l, k in enumerate(seq): w[l//6] |= k << (5*(l % 6))
        out.append(w)
    return out
def load_wtable(P, o):
    if o.wperm is None: return
    n = len(o.wperm)
    if o.w2d:
        if o.p2map == 'A': P(f"s_and_b32 s4, s{s_idx}, 3"); P(f"s_lshr_b32 s5, s{s_idx}, 2")
        else: P(f"s_and_b32 s4, s{s_idx}, 7"); P(f"s_lshr_b32 s5, s{s_idx}, 3")
        if o.w2d == 9: P(f"s_and_b32 s4, s5, {n-1}")
        else: P(f"s_mul_i32 s5, s5, {o.w2d}"); P("s_add_u32 s4, s4, s5"); P(f"s_and_b32 s4, s4, {n-1}")
    else: P(f"s_and_b32 s4, s{s_idx}, {n-1}")
    P("s_lshl_b32 s4, s4, 5")
    P("s_getpc_b64 s[6:7]")
    P("L_pc:")
    P("s_add_u32 s6, s6, L_wtab-L_pc"); P("s_addc_u32 s7, s7, 0")
    P("s_add_u32 s6, s6, s4"); P("s_addc_u32 s7, s7, 0")
    P("s_load_dwordx4 s[20:23], s[6:7], 0"); P("s_load_dwordx2 s[24:25], s[6:7], 16")
def actual_step(l, o, dst):
    if o.wperm is not None:
        return [mk(f"s_bfe_u32 {dst}, s{S_WT + l//6}, {hex((5 << 16) | (5*(l % 6)))}")]
    R = o.R
    L = [mk(f"s_add_u32 {dst}, s{s_ws}, {l & (R-1)}"), mk(f"s_and_b32 {dst}, {dst}, {R-1}")]
    blk = (l // R)*R
    if blk: L.append(mk(f"s_or_b32 {dst}, {dst}, {blk}"))
    return L

def kv_stage(c):
    if c < 3:
        kt = c
        w = [mk(f"ds_write_b128 v{V_KW}, {ar(A_KV+16*c+4*i,4)} offset:{i*4*K_STRIDE}") for i in range(4)]
        r = [mk(f"ds_read_b64 {ar(kf(kt,p)+2*j,2)}, v{V_KR} offset:{64*p + 32*j}") for p in range(4) for j in range(2)]
    else:
        kt = c - 3
        w = [mk(f"ds_write_b128 v{V_VW}, {ar(A_KV+16*c+4*i,4)} offset:{i*4*V_STRIDE}") for i in range(4)]
        r = [mk(f"ds_read_b64_tr_b16 {ar(vf(t)+2*kt,2)}, v{V_VR} offset:{32*t}") for t in range(8)]
    return w, r

def p1_main(P, o):
    kv = kv_loads(o)
    kvq = {}
    if o.kvmode == 'spread': kvq = {c: 2*c+1 for c in range(6)}
    else:
        for q, (a0, a1) in o.kvmode.items():
            for c in range(a0//4, (a1+3)//4): kvq[c] = q
    dsx = {}
    last = -1
    for c in range(6 if not o.vblocks else 3):
        w, r = kv_stage(c)
        nb = max(2*(kvq[c]+2)+1, last+2)
        dsx.setdefault(nb, []).extend(w); dsx.setdefault(nb+1, []).extend(r); last = nb
    assert last+1 <= 31, last
    tb = p2_tables(o)
    sal = {24: tb[:len(tb)//2], 25: tb[len(tb)//2:]}
    early = {27: [0], 28: [1], 29: [2], 30: [3], 31: [4]} if o.n_early == 5 else ({27: [0], 28: [1, 2]} if o.n_early == 3 else {})
    if o.n_early == 5: early = {27: [0, 1], 28: [2], 29: [3], 30: [4]}
    plan = {}
    delayed = getattr(o, 'delayed', ())
    for st in range(2 if o.pro == 1 else 3, 16):
        h1, h2 = split_dma(dma_stage(st, o))
        if st == 2: b1, b2 = (0, 0) if st not in delayed else (0, 1)
        else: b1, b2 = (2*st-5, 2*st-4) if st not in delayed else (2*st-4, 2*st-3)
        assert b2 <= 2*st-2
        plan.setdefault(b1, []).append((st, 0, h1)); plan.setdefault(b2, []).append((st, 1, h2))
    P.wait(vm="dma0"); P("s_barrier")
    stamp(P, o, 1)
    P.extend(frag_reads(0, 0))
    for s in range(16):
        for ss in range(2):
            n = 2*s + ss
            vm = []
            for (st, hf, L) in sorted(plan.get(n, []), key=lambda x: (x[0], x[1])): vm += L
            if ss == 0:
                P.wait(lgkm=0)
                f = frag_reads(s, 1)
                if o.kvmode == 'spread':
                    if s < 12: vm += kv[2*s:2*s+2]
                elif s in o.kvmode: a0, a1 = o.kvmode[s]; vm += kv[a0:a1]
            else:
                if s + 1 <= 15:
                    P.wait(vm=f"dma{s+1}", lgkm=0); P("s_barrier")
                    if o.stage_stamps and (s+1) % 2 == 0: stamp(P, o, (s+1)//2 + 1, True)
                else:
                    P.wait(lgkm=0)
                f = frag_reads(s+1, 0) if s+1 <= 15 else []
            if o.vblocks and n in o.vblocks: a0, a1 = o.vblocks[n]; vm = vm + kv[a0:a1]
            for l in early.get(n, []): vm = vm + wo_dma(l, o)
            nv = sum(1 for i in vm if i.kind in ('dma', 'vload'))
            gaps = [2 + (k*21)//max(nv,1) for k in range(nv)] if nv else [0]
            T = anchor(vm, gaps) + [((k*2)//3, i) for k, i in enumerate(f)] + [(11+k//2, i) for k, i in enumerate(dsx.get(n, []))]
            T += [(12 + k//2, i) for k, i in enumerate(sal.get(n, []))]
            P.extend(fill_gaps(mfma_block(s, ss), T))
    P.wait(lgkm=0)
    P("s_barrier")
    stamp(P, o, 9 if o.stage_stamps else 2, True)

def wo_dma(l, o):
    L = actual_step(l, o, f"s{s_wcur}")
    L += [mk(f"s_lshl_b32 s{s_wcur}, s{s_wcur}, 16"), mk(f"s_add_u32 s{s_wcur}, s{s_wcur}, s{s_wo2}"),
          mk(f"s_mov_b32 m0, s{S_SLOT[l % NSLOT]}")]
    for j in range(4):
        L.append(mk(f"buffer_load_dwordx4 v{V2_WD+j}, {srd(sWO)}, s{s_wcur} offen offset:{j*1024} {o.nt_wo} lds", f"wo{l}"))
    return L
V2_TT = 4
def wo_tr(l):
    L = []
    for tn in range(4):
        L.append(mk(f"v_add_u32 v{V2_TT+tn}, s{S_SLOT[l % NSLOT]}, v{V2_TA+tn}"))
    for tn in range(4):
        for j in range(2):
            L.append(mk(f"ds_read_b64_tr_b16 {rq(woq(l, tn), 2*j, 2)}, v{V2_TT+tn} offset:{j*2048}", f"tr{l}"))
    return L

def softmax_chain(u):
    L = []
    S = [sa(kt, u) + r for kt in range(3) for r in range(4)]
    m = V_M + 4*u; t = m + 1; t2 = m + 2; t3 = m + 3
    A = lambda x: L.append(mk(x))
    A(f"v_max3_f32 v{m}, v{S[0]}, v{S[1]}, v{S[2]}")
    A(f"v_max3_f32 v{t}, v{S[3]}, v{S[4]}, v{S[5]}")
    A(f"v_max3_f32 v{t2}, v{S[6]}, v{S[7]}, v{S[8]}")
    A(f"v_max3_f32 v{t3}, v{S[9]}, v{S[10]}, v{S[11]}")
    A(f"v_max3_f32 v{m}, v{m}, v{t}, v{t2}")
    A(f"v_max_f32 v{m}, v{m}, v{t3}")
    for sw in ("v_permlane16_swap_b32", "v_permlane32_swap_b32"):
        A(f"v_mov_b32 v{t}, v{m}")
        A(f"{sw} v{m}, v{t}")
        A(f"v_max_f32 v{m}, v{m}, v{t}")
    A(f"v_mul_f32 v{m}, s{s_cs}, v{m}")
    for x in S: A(f"v_fma_f32 v{x}, v{x}, s{s_cs}, -v{m}")
    for x in S: A(f"v_exp_f32 v{x}, v{x}")
    A(f"v_add_f32 v{t}, v{S[0]}, v{S[1]}")
    A(f"v_add_f32 v{t2}, v{S[2]}, v{S[3]}")
    A(f"v_add_f32 v{t3}, v{S[4]}, v{S[5]}")
    A(f"v_add_f32 v{m}, v{S[6]}, v{S[7]}")
    A(f"v_add_f32 v{t}, v{t}, v{S[8]}")
    A(f"v_add_f32 v{t2}, v{t2}, v{S[9]}")
    A(f"v_add_f32 v{t3}, v{t3}, v{S[10]}")
    A(f"v_add_f32 v{m}, v{m}, v{S[11]}")
    A(f"v_add_f32 v{t}, v{t}, v{t2}")
    A(f"v_add_f32 v{m}, v{m}, v{t3}")
    A(f"v_add_f32 v{m}, v{m}, v{t}")
    for sw in ("v_permlane16_swap_b32", "v_permlane32_swap_b32"):
        A(f"v_mov_b32 v{t}, v{m}")
        A(f"{sw} v{m}, v{t}")
        A(f"v_add_f32 v{m}, v{m}, v{t}")
    A(f"v_rcp_f32 v{m}, v{m}")
    for x in S: A(f"v_mul_f32 v{x}, v{x}, v{m}")
    for k in range(6):
        A(f"v_cvt_pk_bf16_f32 v{pb(u)+k}, v{S[2*k]}, v{S[2*k+1]}")
    return L

def attention(P, o):
    L = []; A = lambda x, tag=None: L.append(mk(x, tag))
    for p in range(4): A(f"s_add_u32 s{s_t0+p}, s{s_ooff}, {p*6144}")
    for u in range(3):
        for p in range(4):
            for hf in range(2):
                a0 = acc(2*p+hf, u)
                A(f"v_cvt_pk_bf16_f32 v{qb(u,p)+2*hf}, v{a0}, v{a0+1}")
                A(f"v_cvt_pk_bf16_f32 v{qb(u,p)+2*hf+1}, v{a0+2}, v{a0+3}")
    for u in range(3):
        for p in range(4):
            for kt in range(3):
                c = "0" if p == 0 else vr(sa(kt,u),4)
                A(f"v_mfma_f32_16x16x32_bf16 {vr(sa(kt,u),4)}, {ar(kf(kt,p),4)}, {vr(qb(u,p),4)}, {c}")
    for u in range(3): L.extend(softmax_chain(u))
    rel = {}; edges = []
    if o.vblocks:
        assert o.n_attn <= 7 and o.n_pre <= 7 and o.tr_attn == 0
        prev = None
        for c in (3, 4, 5):
            w, r = kv_stage(c)
            for i in w:
                rel[len(L)] = o.vrel + (c-3)*o.vstep; L.append(i)
                if prev:
                    for j in prev: edges.append((j, i, 0))
            for i in r:
                L.append(i)
                for j in w: edges.append((j, i, 20))
            prev = r
    for u in range(3):
        for t in range(8):
            A(f"v_mfma_f32_16x16x32_bf16 {vr(acc(t,u),4)}, {ar(vf(t),4)}, {vr(pb(u),4)}, 0")
        for t in range(8):
            A(f"v_mfma_f32_16x16x16_bf16 {vr(acc(t,u),4)}, {ar(vf(t)+4,2)}, {vr(pb(u)+4,2)}, {vr(acc(t,u),4)}")
    for u in range(3):
        for p in range(4):
            for hf in range(2):
                a0 = acc(2*p+hf, u)
                A(f"v_cvt_pk_bf16_f32 v{qb(u,p)+2*hf}, v{a0}, v{a0+1}")
                A(f"v_cvt_pk_bf16_f32 v{qb(u,p)+2*hf+1}, v{a0+2}, v{a0+3}")
            A(f"buffer_store_dwordx4 {vr(qb(u,p),4)}, v{V_L16}, {srd(sWS)}, s{s_t0+p} offen offset:{u*1024} {o.o_sc}", "ost")
    items = []
    ne = o.n_early
    groups = [('d', l) for l in range(ne, o.n_attn)]
    seq = []
    t_list = list(range(o.tr_attn))
    while groups or t_list:
        if groups: seq.append(groups.pop(0))
        if t_list: seq.append(('t', t_list.pop(0)))
    nslots = len(seq); prev_tr = None
    for k, (kind, l) in enumerate(seq):
        t0 = (k*o.attn_span)//max(nslots, 1)
        if kind == 'd':
            D = wo_dma(l, o); nd = 0
            for i in D:
                rel[len(L)] = t0 + (nd*o.attn_span)//(4*max(nslots,1)) ; L.append(i)
                if i.kind == 'dma': nd += 1
        else:
            wv = mkwait(vm=f"wo{l}", soft=True); rel[len(L)] = t0; L.append(wv)
            T = wo_tr(l)
            for i in T:
                rel[len(L)] = t0; L.append(i)
                if i.kind == 'dsread': edges.append((wv, i, 0))
            if prev_tr is not None:
                for i in T[:4]:
                    for j in prev_tr: edges.append((j, i, 0))
            prev_tr = [i for i in T if i.kind == 'dsread']
            wl = mkwait(lgkm=f"tr{l}", soft=True); rel[len(L)] = t0 + 160; L.append(wl)
            for i in prev_tr: edges.append((i, wl, 100))
            D = wo_dma(l+10, o)
            for i in D:
                rel[len(L)] = t0 + 160; L.append(i)
                if i.kind == 'dma': edges.append((wl, i, 0))
    def sink(i):
        if i.kind == 'vstore' and o.stag:
            m = re.search(r'offset:(\d+)', i.text); u = int(m.group(1))//1024
            return (2-u)*o.stag
        return 0
    order = list_schedule(L, release=rel, verbose=o.verbose, edges=edges, sink_lat=sink, mfma_first=o.mfma_first)
    P.extend(order)
    stamp(P, o, 3)

def gap(P, o):
    issued = set(range(max(o.n_early, o.n_attn))) | {l+10 for l in range(o.tr_attn)}
    def dma(l):
        if l not in issued and l < o.nreg + 10:
            P.extend(wo_dma(l, o)); issued.add(l)
    for l in range(o.n_pre): dma(l)
    P.wait(vm=0 if o.drain else "ost")
    stamp(P, o, 4)
    P("s_barrier").note = 'publish'
    P("s_cmp_lg_u32 s3, 0")
    P("s_cbranch_scc1 L_nosig")
    P("v_mov_b32 v1, 1"); P("v_mov_b32 v2, 0")
    P("s_mov_b64 exec, 1")
    P(f"buffer_atomic_add v1, v2, {srd(sDBG)}, s{s_sig} offen sc1").note = 'slowpath'
    P("s_mov_b64 exec, -1")
    P("L_nosig:")
    P("v_mov_b32 v2, 0")
    for l in range(10): dma(l)
    def poll_load(): P(f"buffer_load_dword v1, v2, {srd(sDBG)}, s{s_poll} offen sc1", "poll")
    for l in range(o.tr_attn, o.nreg):
        if l == o.poll_at: poll_load()
        P.wait(vm=f"wo{l}")
        P.extend(wo_tr(l))
        if l >= 1:
            P.wait(lgkm=f"tr{l-1}")
            dma(l-1+10)
    P.wait(lgkm=f"tr{o.nreg-1}"); dma(o.nreg+9)
    stamp(P, o, 5)
    if o.poll_at >= o.nreg: poll_load()
    P.wait(vm="poll")
    P("v_readfirstlane_b32 s4, v1")
    P("s_cmp_ge_u32 s4, 8")
    P("s_cbranch_scc1 L_polldone")
    P("s_mov_b32 s5, 0")
    P("L_poll:")
    P(f"buffer_load_dword v1, v2, {srd(sDBG)}, s{s_poll} offen sc1").note = 'slowpath'
    i = Inst("s_waitcnt vmcnt(0)"); i.note = 'slowpath'; P.add(i)
    P("v_readfirstlane_b32 s4, v1")
    P("s_add_u32 s5, s5, 1")
    P("s_cmp_gt_u32 s5, 0x40000")
    P("s_cbranch_scc1 L_polldone")
    P("s_cmp_lt_u32 s4, 8")
    P("s_cbranch_scc1 L_poll")
    P("L_polldone:")
    stamp(P, o, 6)

def o_load(i, f, o):
    r = V2_O + (i % o.DO)*24 + f*4
    sreg = s_t0 + (i & 1)*2 + (1 if f >= 4 else 0)
    return mk(f"buffer_load_dwordx4 {vr(r,4)}, v{V_L16}, {srd(sWS)}, s{sreg} offen offset:{(f if f < 4 else f-4)*1024} {o.o_ld}", f"o{i}")
def o_soff(i, o):
    b = s_t0 + (i & 1)*2
    L = actual_step(i, o, f"s{b}")
    L += [mk(f"s_mul_i32 s{b}, s{b}, 6144"), mk(f"s_add_u32 s{b}, s{b}, s{s_oo}"), mk(f"s_add_u32 s{b+1}, s{b}, 4096")]
    return L

def p2_main(P, o):
    DO = o.DO
    for i in range(DO):
        P.extend(o_soff(i, o))
        for f in range(6): P.add(o_load(i, f, o))
    P("v_lshrrev_b32 v1, 3, v0"); P("v_lshrrev_b32 v2, 4, v0"); P("v_and_b32 v3, 15, v0"); P("v_and_b32 v4, 7, v0")
    P(f"s_mul_i32 s4, s3, {RED_WAVE}")
    P(f"v_mul_u32_u24 v5, {RED_STRIDE}, v3"); P("v_lshl_add_u32 v5, v2, 4, v5"); P(f"v_add_u32 v{V2_RW}, s4, v5")
    P(f"s_mul_i32 s4, s3, {24*RED_STRIDE}")
    P(f"v_mul_u32_u24 v5, {RED_STRIDE}, v1"); P("v_lshl_add_u32 v5, v4, 5, v5"); P(f"v_add_u32 v{V2_RR}, s4, v5")
    P(f"v_add_u32 v{V2_RR+1}, {2*RED_WAVE}, v{V2_RR}")
    P("v_lshlrev_b32 v5, 12, v1"); P(f"v_lshl_add_u32 v{V2_OUT}, v4, 4, v5")
    P(f"s_mul_i32 s{s_outoff}, s{s_rt}, {96*4096}"); P(f"s_lshl_b32 s4, s{s_br}, 11"); P(f"s_add_u32 s{s_outoff}, s{s_outoff}, s4")
    P(f"s_lshl_b32 s4, s{s_ct}, 7"); P(f"s_add_u32 s{s_outoff}, s{s_outoff}, s4")
    P(f"s_mul_i32 s4, s3, {24*4096}"); P(f"s_add_u32 s{s_outoff}, s{s_outoff}, s4")
    for i in range(32):
        if i >= o.nreg: P.wait(lgkm=0)
        if i == 31 and o.tail2: P("s_barrier")
        mf = []
        for f in range(6):
            for tn in range(4):
                c = "0" if i == 0 else vr(acc2(tn,f),4)
                mf.append(mk(f"v_mfma_f32_16x16x32_bf16 {vr(acc2(tn,f),4)}, {rq(woq(i, tn), 0, 4)}, {vr(V2_O+(i%DO)*24+f*4,4)}, {c}"))
        if o.p2exp == 'nomfma': mf = [mk(f"v_mov_b32 v{8+k}, v{V2_O+(i%DO)*24+(k//4)*4}") for k in range(24)]
        T = []
        if i+DO < 32: T += [(0, x) for x in o_soff(i+DO, o)]
        if o.nreg <= i+1 < 32:
            T.append((1, mkwait(vm=f"wo{i+1}")))
            T += [(1, x) for x in wo_tr(i+1)]
        if i+DO < 32 and o.p2exp != 'noload': T += [(4*f+3, o_load(i+DO, f, o)) for f in range(6)]
        if o.nreg <= i < 22:
            T += [(5+2*k, x) for k, x in enumerate(wo_dma(i+10, o))]
        if i == 31 and o.tail2:
            T += [(min(4*f+tn+5, 23), mk(f"ds_write_b128 v{V2_RW}, {vr(acc2(tn,f),4)} offset:{f*16*RED_STRIDE + tn*64}")) for f in range(6) for tn in range(4) if 4*f+tn+5 <= 23]
        P.extend(fill_gaps(mf, T))
    stamp(P, o, 7)

def p2_epilogue(P, o):
    if not o.tail2: P("s_barrier")
    for f in range(6):
        for tn in range(4):
            if o.tail2 and 4*f+tn+5 <= 23: continue
            P(f"ds_write_b128 v{V2_RW}, {vr(acc2(tn,f),4)} offset:{f*16*RED_STRIDE + tn*64}")
    P.wait(lgkm=0); P("s_barrier")
    for i in range(3):
        for wv in range(4):
            for h in range(2):
                P(f"ds_read_b128 {vr(V2_R + (i*4+wv)*8 + 4*h, 4)}, v{V2_RR + (wv>>1)} offset:{(wv&1)*RED_WAVE + i*8*RED_STRIDE + 16*h}")
    for i in range(3):
        b = V2_R + i*32
        for e in range(8):
            P(f"v_add_f32 v{b+e}, v{b+e}, v{b+8+e}")
            P(f"v_add_f32 v{b+16+e}, v{b+16+e}, v{b+24+e}")
        for e in range(8): P(f"v_add_f32 v{b+e}, v{b+e}, v{b+16+e}")
        for e in range(4): P(f"v_cvt_pk_bf16_f32 v{b+e}, v{b+2*e}, v{b+2*e+1}")
        P(f"s_add_u32 s4, s{s_outoff}, {i*8*4096}")
        P(f"buffer_store_dwordx4 {vr(b,4)}, v{V2_OUT}, {srd(sOUT)}, s4 offen {o.out_sc}")
    stamp(P, o, 8)

def write_stamps(P, o, n):
    if not o.stamps: return
    P.wait(lgkm=0)
    P("v_mov_b32 v1, 0")
    for j in range(2*n): P(f"v_writelane_b32 v1, s{S_STAMP+j}, {j}")
    P("s_lshl_b32 s4, s2, 2"); P("s_add_u32 s4, s4, s3"); P("s_lshl_b32 s4, s4, 7"); P(f"s_add_u32 s4, s4, {STAMP_OFF}")
    P("v_lshlrev_b32 v2, 2, v0")
    P(f"s_mov_b64 exec, {hex((1<<(2*n))-1)}")
    P(f"buffer_store_dword v1, v2, {srd(sWS)}, s4 offen")
    P("s_mov_b64 exec, -1")

def kernel_text(name, insts):
    return f""".text
.globl {name}
.p2align 8
.type {name},@function
{name}:
{text_of(insts)}
.section .rodata,"a"
.p2align 6
.amdhsa_kernel {name}
  .amdhsa_next_free_vgpr 512
  .amdhsa_next_free_sgpr 102
  .amdhsa_accum_offset 256
  .amdhsa_group_segment_fixed_size 0
  .amdhsa_kernarg_size 104
  .amdhsa_user_sgpr_count 2
  .amdhsa_user_sgpr_kernarg_segment_ptr 1
  .amdhsa_system_sgpr_workgroup_id_x 1
.end_amdhsa_kernel
.text
"""

def gen_kernel(name, o):
    NREG[0] = o.nreg; ARCH0[0] = V2_O + 24*o.DO
    assert ARCH0[0] + 16*(o.nreg-16) <= 256
    P = Prog()
    P("L_start:")
    prologue(P, o)
    p1_scalar(P, o)
    p1_vector_a(P)
    build_srds(P)
    if o.pro_stamps: stamp(P, o, 3, True)
    for s in range(3 if o.pro == 0 else 1):
        P.extend(dma_stage(s, o))
        if o.pro_stamps: stamp(P, o, 4+s, True)
    if o.ctouch:
        P("s_getpc_b64 s[6:7]")
        P("L_pc2:")
        P("s_sub_u32 s6, s6, L_pc2-L_start"); P("s_subb_u32 s7, s7, 0")
        P(f"s_lshl_b32 s4, s{s_idx}, 2"); P("s_add_u32 s4, s4, s3"); P("s_mul_i32 s4, s4, 384")
        P("v_lshl_add_u32 v7, v0, 7, s4")
        P("v_min_u32 v7, L_exit-L_start, v7")
        P("s_mov_b64 exec, 7")
        P("global_load_dword v254, v7, s[6:7]", "touch")
        P("s_mov_b64 exec, -1")
    build_srds2(P)
    p1_scalar2(P, o)
    load_wtable(P, o)
    p1_vector_b(P)
    if o.pro >= 1: P.extend(dma_stage(1, o))
    if o.pro == 2: P.extend(dma_stage(2, o))
    if o.touch:
        P("v_mov_b32 v7, 0")
        P("s_lshl_b32 s4, s3, 21")
        P(f"buffer_load_dword v254, v7, {srd(sWO)}, s4 offen", "touch")
        P(f"s_mul_i32 s4, s{s_rt}, {96*4096}")
        P(f"buffer_load_dword v254, v7, {srd(sOUT)}, s4 offen", "touch")
        if o.touch >= 2:
            P(f"buffer_load_dword v254, v7, {srd(sK)}, s{s_kvoff} offen", "touch")
            P(f"buffer_load_dword v254, v7, {srd(sV)}, s{s_kvoff} offen", "touch")
        if o.touch >= 3:
            assert o.oblk == 1 << 20
            P(f"s_and_b32 s4, s{s_ooff}, 0xfff00000"); P("s_add_u32 s4, s4, 0xc0000")
            P(f"buffer_load_dword v254, v7, {srd(sWS)}, s4 offen", "touch")
            P(f"s_lshl_b32 s4, s{s_br}, 3"); P(f"s_add_u32 s4, s4, s{s_rt}"); P("s_lshl_b32 s4, s4, 20"); P("s_add_u32 s4, s4, 0xc0000")
            P(f"buffer_load_dword v254, v7, {srd(sWS)}, s4 offen", "touch")
    if o.pro_stamps: stamp(P, o, 7, True)
    if o.upto >= 1:
        if isinstance(o.kvmode, list):
            P(f"s_mul_i32 s4, s{s_bg}, {o.phi[0]}"); P(f"s_lshr_b32 s5, s{s_idx}, 2"); P(f"s_mul_i32 s5, s5, {o.phi[1]}")
            P("s_add_u32 s4, s4, s5"); P("s_and_b32 s4, s4, 3")
            modes = o.kvmode
            for ph in (1, 2, 3):
                P(f"s_cmp_eq_u32 s4, {ph}"); P(f"s_cbranch_scc1 L_var{ph}")
            for ph in range(4):
                if ph: P(f"L_var{ph}:")
                o.kvmode = modes[ph]
                o.delayed = o.delay_sets[ph] if o.delay_sets else ()
                Q = Prog(); p1_main(Q, o)
                sub = resolve_waits(Q.insts + [mkwait(vm=None, lgkm=None)])
                P.add(Inst(".variant_begin")); P.extend(Q.insts); P.add(Inst(".variant_end"))
                if ph < 3: P("s_branch L_varjoin")
            P("L_varjoin:")
            o.kvmode = modes
        else:
            p1_main(P, o)
    if o.upto >= 2: attention(P, o)
    if o.upto >= 3: gap(P, o)
    if o.upto >= 4:
        p2_main(P, o)
        p2_epilogue(P, o)
    if o.endwait or o.stamps: P.wait(vm=0)
    stamp(P, o, 9)
    write_stamps(P, o, 10)
    if o.endwait or o.stamps: P.wait(vm=0)
    P("L_exit:")
    P("s_endpgm")
    if o.wperm is not None:
        P(".p2align 6"); P("L_wtab:")
        for w in wtable_words(o): P(".long " + ", ".join(hex(x) for x in w))
    insts, nops = finalize(P)
    for ta in (False, True):
        for ts in (False, True):
            bad = verify_counters(insts, ta, ts)
            assert not bad, (name, ta, ts, bad[:5])
    txt = kernel_text(name, insts)
    txt = txt.replace(".variant_begin", "").replace(".variant_end", "")
    for lab in ("L_exit", "L_nosig", "L_polldone", "L_poll", "L_var1", "L_var2", "L_var3", "L_varjoin", "L_pc", "L_wtab", "L_pc2", "L_start"):
        txt = re.sub(r'\b' + lab + r'\b', lab + "_" + name[-24:], txt)
    return txt, len(insts), nops

def pioneer_perm(L, period=4, n=16):
    out = []
    for phi in range(period):
        left = list(range(n)); seq = []
        for t in range(n):
            k = t + L if (t % period == phi and t + L in left) else left[0]
            left.remove(k); seq.append(k)
        out.append(seq)
    return out

HEADER = """; concat_heads( MHA block , GQA block ):  out[:, :, 0:1024] = branch A, out[:, :, 1024:2048] = branch B,
"""
def final_file(o):
    t, n, _ = gen_kernel(KNAME, o)
    return HEADER + "; @launch grid=(256,1,1) block=(256,1,1) lds=163840\n" + '.amdgcn_target "amdgcn-amd-amdhsa--gfx950"\n' + t

def build(V, fn="fx"):
    from hipmini import metadata, assemble
    s = '.amdgcn_target "amdgcn-amd-amdhsa--gfx950"\n'; ks = []
    for n, o in V.items():
        t, ni, nops = gen_kernel(n, o); s += t; ks.append((n, 102, 512, 256))
    s += metadata(ks, 13)
    open(f"work/{fn}.s", "w").write(s); assemble(f"work/{fn}.s", f"work/{fn}.co"); print(" ".join(V), ni, nops)

if __name__ == "__main__":
    V = {}
    def k6(*st): return {q:(4*i,4*i+4) for i, q in enumerate(st)}
    base = dict(stamps=True, nt_kv="nt", tail2=True, stag=300, out_sc="sc1", n_early=5, n_attn=5, n_pre=5,
            perm=pioneer_perm(3), hmap=1, mfma_first=True, cmap=1, pro=1, kvmode=k6(2,4,6,8,10,12), p2map='B', R=8, p2rot_c=0, p2rot_r=1)
    for clk, nm in (("s_memrealtime", "t"), ("s_memtime", "c")):
        V[f"{nm}_full"] = Opt(**base, nreg=20, DO=2, poll_at=19, clk=clk)
        V[f"{nm}_nomfma"] = Opt(**base, nreg=20, DO=2, poll_at=19, clk=clk, p2exp='nomfma')
        V[f"{nm}_noload"] = Opt(**base, nreg=20, DO=2, poll_at=19, clk=clk, p2exp='noload')
        V[f"{nm}_D3"] = Opt(**base, nreg=18, DO=3, poll_at=17, clk=clk)
    build(V)
```

```python
from g3 import *
from mkfinal import FINAL, k6
V = {"e_final": Opt(**FINAL), "e_ct": Opt(**FINAL, ctouch=True)}
build(V, "ev")
V2 = {"t_final": Opt(**FINAL, stamps=True), "t_ct": Opt(**FINAL, ctouch=True, stamps=True)}
build(V2, "fx")
open("../cdna_kernels/ct.s", "w").write(final_file(Opt(**FINAL, ctouch=True)))
```

```python
import sys, math, re, struct
from asmgen import *

KNAME = "concat_heads__mha_block_cached__gqa_block_cached__near_ridge_kernel"
STAMP_OFF = 16 << 20

sX, sWQ, sK, sV, sWS, sWO, sOUT, sDBG = 32, 36, 40, 44, 48, 52, 56, 60
S_TO, S_TW = 32, 40
s_br, s_h, s_b, s_bg, s_hg, s_idx = 26, 27, 28, 29, 30, 31
s_xoff, s_woff, s_kvoff, s_ooff, s_mx, s_mw = 64, 65, 66, 67, 68, 69
s_t0 = 70
s_kb = 74; s_m2 = 75; s_cs = 76
s_st, s_xb, s_wb = 77, 78, 79
s_pm2 = 75
s_wcur = 15; s_outoff = 78; s_oo = 8; s_wo2 = 9
S_SLOT = [40, 41, 42, 43, 66, 74, 17, 10, 11, 16]
s_rt, s_ct = 18, 19
s_sig, s_poll = 100, 101
S_STAMP = 80

def srd(n): return f"s[{n}:{n+3}]"
def vr(n, c=1): return f"v{n}" if c == 1 else f"v[{n}:{n+c-1}]"
def ar(n, c=1): return f"a{n}" if c == 1 else f"a[{n}:{n+c-1}]"
def f32bits(x): return hex(struct.unpack('<I', struct.pack('<f', x))[0])

class Opt:
    def __init__(self, **kw):
        self.nt_x = ""; self.nt_w = ""; self.nt_kv = ""; self.nt_wo = ""; self.o_sc = "sc1"; self.o_ld = "sc1"; self.out_sc = ""
        self.stamps = False; self.clk = 's_memrealtime'; self.stage_stamps = False
        self.rot = False; self.rb = 8; self.rot_bg = 2; self.rot_h = 1; self.kvmode = 'spread'
        self.p2map = 'A'; self.p2rot_c = 1; self.p2rot_r = 2
        self.n_attn = 10
        self.attn_span = 2600
        self.DO = 3; self.n_pre = 10; self.upto = 9; self.tr_pre = 0; self.merge31 = False; self.nob16 = False; self.morder = 't'; self.ctn = 3; self.ctouch = False; self.p2exp = ''; self.vrel = 100; self.vstep = 150; self.vblocks = None; self.delay_sets = None; self.oblk = 32*24576; self.pro = 0; self.pro_stamps = False; self.w2d = 0; self.xor = 0; self.drain = True; self.perm_ws = False; self.hmap = 0; self.cmap = 0; self.touch = False; self.pk = False; self.mfma_first = False; self.nreg = 16; self.tail2 = False; self.stag = 0; self.endwait = True; self.wperm = None; self.perm = None; self.phi = (1, 3); self.R = 8; self.n_mid = 0; self.n_early = 5; self.tr_attn = 0; self.poll_at = 16
        self.verbose = False
        self.__dict__.update(kw)

def stamp(P, o, i, stage=False):
    if o.stamps and (stage or not o.stage_stamps or i <= 1): P(f"{o.clk} s[{S_STAMP+2*i}:{S_STAMP+2*i+1}]")

ACC = 8
def acc(t, u): return ACC + (t*3 + u)*4
V_X, V_W, V_TA, V_XR, V_L16 = 104, 110, 114, 122, 124
V_KW, V_VW, V_KR, V_VR = 125, 126, 127, 128
V2_WD, V2_TA = 130, 134
QB = 140
def qb(u, p): return QB + (u*4 + p)*4
SA = 188
def sa(kt, u): return SA + (u*3 + kt)*4
PB = 224
def pb(u): return PB + u*6
V_M = 242
A_KV = 0
def kf(kt, p): return A_KV + (kt*4 + p)*4
def vf(t): return 184 + t*6
A_FA, A_FB = 96, 160
def fa(buf, t): return A_FA + buf*32 + t*4
def fb(buf, u): return A_FB + buf*12 + u*4
LDS_W, LDS_X = 0, 49152
K_STRIDE, V_STRIDE = 272, 288
KV_BASE = [122880 + w*4608 for w in range(4)]
def acc2(tn, f): return 8 + (f*4 + tn)*4
V2_O = 140
V2_RW, V2_RR, V2_OUT = 104, 105, 107
V2_R = 132
_Q1 = list(range(48, 184, 4)) + list(range(232, 256, 4))
_Q2 = list(range(0, 48, 4)) + list(range(184, 232, 4))
NREG = [16]; ARCH0 = [188]
def woq(l, tn):
    if l < 10: return ('a', _Q1[4*l + tn])
    if l < 16: return ('a', _Q2[4*(l-10) + tn])
    if l < NREG[0]: return ('v', ARCH0[0] + 16*(l-16) + 4*tn)
    return ('a', _Q1[4*(l & 1) + tn])
def rq(q, off, n): return f"{q[0]}[{q[1]+off}:{q[1]+off+n-1}]"
NSLOT = 10
RED_STRIDE = 272; RED_WAVE = 96*272

def prologue(P, o):
    P("s_cmp_ge_u32 s2, 0x100")
    P("s_cbranch_scc1 L_exit")
    if o.xor: P(f"s_xor_b32 s2, s2, {o.xor}")
    stamp(P, o, 0)
    P("v_lshrrev_b32 v1, 6, v0")
    P("s_and_b32 s4, s2, 7")
    P("v_readfirstlane_b32 s3, v1")
    P(f"s_lshr_b32 s{s_br}, s4, 2")
    P(f"s_and_b32 s{s_hg}, s4, 3")
    P(f"s_lshr_b32 s{s_idx}, s2, 3")
    P(f"s_mul_i32 s5, s{s_br}, 40")
    P("s_add_u32 s6, s0, s5")
    P("s_addc_u32 s7, s1, 0")
    P("s_load_dwordx8 s[8:15], s[6:7], 0")
    P("s_load_dwordx2 s[16:17], s[6:7], 32")
    P("s_load_dwordx4 s[20:23], s[0:1], 80")
    P("s_load_dwordx2 s[24:25], s[0:1], 96")
    P("v_and_b32 v0, 63, v0")
    if o.ctouch == 2: code_touch(P, o)

def code_touch(P, o):
    P("s_getpc_b64 s[18:19]")
    P("L_pc2:")
    P("s_sub_u32 s18, s18, L_pc2-L_start"); P("s_subb_u32 s19, s19, 0")
    P(f"s_lshl_b32 s4, s{s_idx}, 2"); P("s_add_u32 s4, s4, s3"); P(f"s_mul_i32 s4, s4, {128*o.ctn}")
    P("v_lshl_add_u32 v7, v0, 7, s4")
    P("v_min_u32 v7, L_exit-L_start, v7")
    P(f"s_mov_b64 exec, {(1 << o.ctn) - 1}")
    P("global_load_dword v254, v7, s[18:19]", "touch")
    P("s_mov_b64 exec, -1")

def build_srds(P):
    P.wait(lgkm=0)
    def one(n, lo, size):
        P(f"s_mov_b32 s{n}, s{lo}"); P(f"s_and_b32 s{n+1}, s{lo+1}, 0xffff")
        P(f"s_mov_b32 s{n+2}, {size}"); P(f"s_mov_b32 s{n+3}, 0x20000")
    one(sWQ, 14, 1024*4096*2); one(sX, 8, 16*48*1024*2)

def build_srds2(P):
    def one(n, lo, size):
        P(f"s_mov_b32 s{n}, s{lo}"); P(f"s_and_b32 s{n+1}, s{lo+1}, 0xffff")
        P(f"s_mov_b32 s{n+2}, {size}"); P(f"s_mov_b32 s{n+3}, 0x20000")
    one(sK, 10, 16*32*48*128*2); one(sV, 12, 16*32*48*128*2)
    one(sWO, 16, 4096*1024*2); one(sOUT, 20, 16*48*2048*2)
    one(sDBG, 22, 256); one(sWS, 24, 268435456)

def p1_scalar(P, o):
    P(f"s_and_b32 s{s_bg}, s{s_idx}, 3")
    P(f"s_lshr_b32 s4, s{s_idx}, 2")
    if o.hmap == 0:
        P(f"s_lshl_b32 s{s_h}, s{s_hg}, 3")
        P(f"s_add_u32 s{s_h}, s{s_h}, s4")
    else:
        P(f"s_lshl_b32 s{s_h}, s4, 2")
        P(f"s_add_u32 s{s_h}, s{s_h}, s{s_hg}")
    P(f"s_lshl_b32 s{s_b}, s{s_bg}, 2")
    P(f"s_add_u32 s{s_b}, s{s_b}, s3")
    P(f"s_mul_i32 s{s_xoff}, s{s_b}, {48*2048}")
    P(f"s_lshl_b32 s4, s3, 17")
    P(f"s_lshl_b32 s{s_woff}, s{s_h}, 8")
    P(f"s_add_u32 s{s_woff}, s{s_woff}, s4")
    P(f"s_mul_i32 s{s_mx}, s3, 6144"); P(f"s_add_u32 s{s_mx}, s{s_mx}, {LDS_X}")
    P(f"s_lshl_b32 s{s_mw}, s3, 12")
    if o.perm is not None:
        P(f"s_mul_i32 s4, s{s_bg}, {o.phi[0]}"); P(f"s_lshr_b32 s5, s{s_idx}, 2"); P(f"s_mul_i32 s5, s5, {o.phi[1]}")
        P("s_add_u32 s4, s4, s5"); P("s_and_b32 s4, s4, 3")
        if o.perm_ws:
            P.wait(lgkm=0)
            P("s_lshl_b32 s4, s4, 3"); P(f"s_add_u32 s4, s4, {20 << 20}")
            P("s_add_u32 s6, s24, s4"); P("s_addc_u32 s7, s25, 0")
            P("s_load_dwordx2 s[18:19], s[6:7], 0")
            P.wait(lgkm=0)
            P(f"s_mov_b32 s{s_st}, s18"); P(f"s_mov_b32 s{s_pm2}, s19")
        else:
            words = [sum(k << (4*i) for i, k in enumerate(p)) for p in o.perm]
            P(f"s_mov_b32 s{s_st}, {words[0] & 0xffffffff}"); P(f"s_mov_b32 s{s_pm2}, {words[0] >> 32}")
            for ph in (1, 2, 3):
                P(f"s_cmp_eq_u32 s4, {ph}")
                P(f"s_cselect_b32 s{s_st}, {words[ph] & 0xffffffff}, s{s_st}"); P(f"s_cselect_b32 s{s_pm2}, {words[ph] >> 32}, s{s_pm2}")
        P(f"s_mov_b32 s{s_xb}, s{s_xoff}"); P(f"s_mov_b32 s{s_wb}, s{s_woff}")
        P(f"s_and_b32 s4, s{s_st}, 15")
        P(f"s_lshl_b32 s5, s4, 7"); P(f"s_add_u32 s{s_xoff}, s{s_xb}, s5")
        P(f"s_lshl_b32 s4, s4, 19"); P(f"s_add_u32 s{s_woff}, s{s_wb}, s4")
    elif o.rot:
        P(f"s_mul_i32 s4, s{s_bg}, {o.rot_bg}"); P(f"s_lshr_b32 s5, s{s_idx}, 2"); P(f"s_mul_i32 s5, s5, {o.rot_h}")
        P(f"s_add_u32 s{s_st}, s4, s5"); P(f"s_and_b32 s{s_st}, s{s_st}, {o.rb-1}")
        P(f"s_mov_b32 s{s_xb}, s{s_xoff}"); P(f"s_mov_b32 s{s_wb}, s{s_woff}")
        P(f"s_lshl_b32 s4, s{s_st}, 7"); P(f"s_add_u32 s{s_xoff}, s{s_xb}, s4")
        P(f"s_lshl_b32 s4, s{s_st}, 19"); P(f"s_add_u32 s{s_woff}, s{s_wb}, s4")

def p1_scalar2(P, o):
    P(f"s_lshl_b32 s4, s{s_b}, 5"); P(f"s_add_u32 s4, s4, s{s_h}")
    P(f"s_mul_i32 s{s_kvoff}, s4, 12288")
    P(f"s_lshl_b32 s4, s{s_br}, 3"); P(f"s_lshr_b32 s5, s{s_b}, 1"); P("s_add_u32 s4, s4, s5")
    P(f"s_mul_i32 s4, s4, {o.oblk}"); P(f"s_mul_i32 s{s_ooff}, s{s_h}, 24576"); P(f"s_add_u32 s{s_ooff}, s{s_ooff}, s4")
    P(f"s_and_b32 s5, s{s_b}, 1"); P("s_mul_i32 s5, s5, 3072"); P(f"s_add_u32 s{s_ooff}, s{s_ooff}, s5")
    P(f"s_mov_b32 s{s_kb}, {KV_BASE[0]}")
    for w in (1, 2, 3):
        P(f"s_cmp_eq_u32 s3, {w}"); P(f"s_cselect_b32 s{s_kb}, {KV_BASE[w]}, s{s_kb}")
    P(f"s_mov_b32 s{s_cs}, {f32bits(math.log2(math.e)/math.sqrt(128.0))}")
    P(f"s_lshl_b32 s4, s{s_br}, 4"); P(f"s_lshl_b32 s5, s{s_bg}, 2"); P("s_add_u32 s4, s4, s5")
    P(f"s_lshr_b32 s5, s{s_h}, 3"); P("s_add_u32 s4, s4, s5"); P(f"s_lshl_b32 s{s_sig}, s4, 3")
    P(f"s_mov_b32 s{s_t0}, s{s_kvoff}"); P(f"s_add_u32 s{s_t0+1}, s{s_kvoff}, 4096"); P(f"s_add_u32 s{s_t0+2}, s{s_kvoff}, 8192")
    if o.p2map == 'A':
        P(f"s_and_b32 s4, s{s_hg}, 1"); P("s_lshl_b32 s4, s4, 2"); P(f"s_and_b32 s5, s{s_idx}, 3"); P(f"s_add_u32 s{s_rt}, s4, s5")
        P(f"s_lshr_b32 s4, s{s_hg}, 1"); P("s_lshl_b32 s4, s4, 3"); P(f"s_lshr_b32 s5, s{s_idx}, 2"); P(f"s_add_u32 s{s_ct}, s4, s5")
    else:
        P(f"s_and_b32 s{s_rt}, s{s_idx}, 7")
        if o.cmap == 0:
            P(f"s_lshl_b32 s4, s{s_hg}, 2"); P(f"s_lshr_b32 s5, s{s_idx}, 3"); P(f"s_add_u32 s{s_ct}, s4, s5")
        elif o.cmap == 1:
            P(f"s_lshr_b32 s5, s{s_idx}, 3"); P("s_lshl_b32 s5, s5, 2"); P(f"s_add_u32 s{s_ct}, s{s_hg}, s5")
        else:
            P(f"s_lshr_b32 s5, s{s_idx}, 3"); P(f"s_and_b32 s4, s5, 1"); P(f"s_lshr_b32 s5, s5, 1"); P("s_lshl_b32 s5, s5, 2"); P("s_add_u32 s4, s4, s5")
            P(f"s_and_b32 s5, s{s_hg}, 1"); P("s_lshl_b32 s5, s5, 1"); P("s_add_u32 s4, s4, s5")
            P(f"s_lshr_b32 s5, s{s_hg}, 1"); P("s_lshl_b32 s5, s5, 3"); P(f"s_add_u32 s{s_ct}, s4, s5")
    P.extend(p2_slots789())
    P(f"s_lshl_b32 s4, s{s_br}, 4"); P(f"s_lshr_b32 s5, s{s_rt}, 1"); P("s_lshl_b32 s5, s5, 2"); P("s_add_u32 s4, s4, s5")
    P("s_add_u32 s4, s4, s3"); P(f"s_lshl_b32 s{s_poll}, s4, 3")

def p1_vector_a(P):
    P("v_lshrrev_b32 v1, 3, v0")
    P("v_lshrrev_b32 v2, 4, v0")
    P("v_and_b32 v3, 15, v0")
    P("v_lshrrev_b32 v4, 1, v3"); P("v_and_b32 v5, 1, v0")
    for j in range(4):
        if j in (0, 2):
            P(f"v_or_b32 v6, {(j>>1)<<2}, v2"); P("v_xor_b32 v6, v6, v4"); P("v_lshlrev_b32 v6, 5, v6")
            P("v_lshl_add_u32 v6, v5, 4, v6"); P("v_lshl_add_u32 v6, v2, 13, v6")
        P(f"v_add_u32 v{V_W+j}, {4*j*8192 - j*1024}, v6")
    P("v_and_b32 v4, 7, v0")
    for par in range(2):
        P(f"v_or_b32 v6, {4*par}, v2"); P("v_xor_b32 v6, v6, v4"); P("v_lshlrev_b32 v6, 4, v6")
        P("v_lshl_add_u32 v6, v1, 11, v6")
        for i in range(par, 6, 2):
            imm = (i if i < 4 else i-4)*1024
            P(f"v_add_u32 v{V_X+i}, {8*i*2048-imm}, v6")

def p1_vector_b(P):
    P("v_lshrrev_b32 v4, 2, v3")
    P("v_and_b32 v5, 3, v0")
    P("v_and_b32 v6, 1, v2"); P("v_lshl_or_b32 v6, v6, 2, v4")
    P("v_lshl_add_u32 v7, v2, 3, v4"); P("v_lshlrev_b32 v7, 8, v7"); P("v_lshl_add_u32 v7, v5, 3, v7")
    P(f"v_lshl_add_u32 v{V_TA}, v6, 5, v7")
    for tt in range(1, 8): P(f"v_xor_b32 v{V_TA+tt}, {tt*32}, v{V_TA}")
    P("v_lshrrev_b32 v6, 1, v3"); P("v_xor_b32 v6, v6, v2"); P("v_lshlrev_b32 v6, 4, v6"); P("v_lshl_add_u32 v6, v3, 7, v6")
    P(f"v_add_u32 v{V_XR}, s{s_mx}, v6"); P(f"v_xor_b32 v{V_XR+1}, 64, v{V_XR}")
    P(f"v_lshlrev_b32 v{V_L16}, 4, v0")
    P(f"v_mul_u32_u24 v6, {K_STRIDE}, v2"); P("v_lshl_add_u32 v6, v3, 4, v6"); P(f"v_add_u32 v{V_KW}, s{s_kb}, v6")
    P(f"v_mul_u32_u24 v6, {V_STRIDE}, v2"); P("v_lshl_add_u32 v6, v3, 4, v6"); P(f"v_add_u32 v{V_VW}, s{s_kb}, v6")
    P(f"v_mul_u32_u24 v6, {K_STRIDE}, v3"); P("v_lshl_add_u32 v6, v2, 3, v6"); P(f"v_add_u32 v{V_KR}, s{s_kb}, v6")
    P("v_lshl_add_u32 v6, v2, 2, v4")
    P(f"v_mul_u32_u24 v7, {V_STRIDE}, v6"); P("v_lshl_add_u32 v7, v5, 3, v7"); P(f"v_add_u32 v{V_VR}, s{s_kb}, v7")
    P("v_lshrrev_b32 v7, 1, v6"); P("v_and_b32 v7, 3, v7")
    P("v_lshlrev_b32 v6, 7, v6"); P("v_lshl_add_u32 v6, v5, 3, v6"); P("v_lshl_add_u32 v6, v7, 5, v6")
    P(f"v_mov_b32 v{V2_TA}, v6")
    for tn in range(1, 4): P(f"v_xor_b32 v{V2_TA+tn}, {tn*32}, v{V2_TA}")
    P("v_and_b32 v6, 7, v0"); P("v_lshrrev_b32 v6, 1, v6"); P("v_xor_b32 v6, v6, v2"); P("v_lshlrev_b32 v6, 5, v6")
    P("v_and_b32 v7, 1, v0"); P("v_lshl_add_u32 v6, v7, 4, v6")
    P(f"v_lshl_add_u32 v{V2_WD}, v1, 11, v6")
    for j in range(1, 4): P(f"v_add_u32 v{V2_WD+j}, {j*(16384-1024)}, v{V2_WD}")

def dma_stage(s, o):
    slot = s % 3; L = []; tag = f"dma{s}"
    L.append(mk(f"s_add_u32 m0, s{s_mw}, {LDS_W + slot*16384}"))
    for j in range(4):
        L.append(mk(f"buffer_load_dwordx4 v{V_W+j}, {srd(sWQ)}, s{s_woff} offen offset:{j*1024} {o.nt_w} lds", tag))
    L.append(mk(f"s_add_u32 m0, s{s_mx}, {slot*24576}"))
    for i in range(4):
        L.append(mk(f"buffer_load_dwordx4 v{V_X+i}, {srd(sX)}, s{s_xoff} offen offset:{i*1024} {o.nt_x} lds", tag))
    L.append(mk(f"s_add_u32 m0, s{s_mx}, {slot*24576+4096}"))
    for i in (4, 5):
        L.append(mk(f"buffer_load_dwordx4 v{V_X+i}, {srd(sX)}, s{s_xoff} offen offset:{(i-4)*1024} {o.nt_x} lds", tag))
    if o.perm is not None:
        if s < 15:
            src = s_st if s+1 < 8 else s_pm2
            L.append(mk(f"s_bfe_u32 s4, s{src}, {hex((4 << 16) | (4*((s+1) & 7)))}"))
            L.append(mk(f"s_lshl_b32 s5, s4, 7"))
            L.append(mk(f"s_add_u32 s{s_xoff}, s{s_xb}, s5"))
            L.append(mk(f"s_lshl_b32 s4, s4, 19"))
            L.append(mk(f"s_add_u32 s{s_woff}, s{s_wb}, s4"))
    elif not o.rot:
        L.append(mk(f"s_add_u32 s{s_woff}, s{s_woff}, {64*8192}"))
        L.append(mk(f"s_add_u32 s{s_xoff}, s{s_xoff}, 128"))
    else:
        blk = ((s+1)//o.rb)*o.rb
        L.append(mk(f"s_add_u32 s{s_st}, s{s_st}, 1"))
        L.append(mk(f"s_and_b32 s{s_st}, s{s_st}, {o.rb-1}"))
        L.append(mk(f"s_or_b32 s4, s{s_st}, {blk}"))
        L.append(mk(f"s_lshl_b32 s5, s4, 7"))
        L.append(mk(f"s_add_u32 s{s_xoff}, s{s_xb}, s5"))
        L.append(mk(f"s_lshl_b32 s4, s4, 19"))
        L.append(mk(f"s_add_u32 s{s_woff}, s{s_wb}, s4"))
    return L

def frag_reads(s, ss):
    slot = s % 3; buf = (2*s+ss) & 1; L = []
    for u in range(3):
        L.append(mk(f"ds_read_b128 {ar(fb(buf,u),4)}, v{V_XR+ss} offset:{slot*24576 + u*2048}", f"fr{s}"))
    for t in range(8):
        for j in range(2):
            L.append(mk(f"ds_read_b64_tr_b16 {ar(fa(buf,t)+2*j,2)}, v{V_TA+t} offset:{slot*16384 + ss*8192 + j*1024}", f"fr{s}"))
    return L

MORDER = ['t']
def mfma_block(s, ss):
    buf = (2*s+ss) & 1; L = []
    order = [(t, u) for t in range(8) for u in range(3)] if MORDER[0] == 't' else [(t, u) for u in range(3) for t in range(8)]
    if MORDER[0] == 'z': order = [(t if u % 2 == 0 else 7-t, u) for u in range(3) for t in range(8)]
    if MORDER[0] == 's': order = [(t, u if t % 2 == 0 else 2-u) for t in range(8) for u in range(3)]
    for (t, u) in order:
        if True:
            c = "0" if (s == 0 and ss == 0) else vr(acc(t,u),4)
            L.append(mk(f"v_mfma_f32_16x16x32_bf16 {vr(acc(t,u),4)}, {ar(fa(buf,t),4)}, {ar(fb(buf,u),4)}, {c}"))
    return L

def kv_loads(o):
    L = []
    for i in range(24):
        isv = i >= 12; ii = i % 12
        L.append(mk(f"buffer_load_dwordx4 {ar(A_KV+4*i,4)}, v{V_L16}, {srd(sV if isv else sK)}, s{s_t0 + (ii//4)} offen offset:{(ii%4)*1024} {o.nt_kv}", "kv"))
    return L

def split_dma(L):
    n = 0
    for k, i in enumerate(L):
        if i.kind == 'dma':
            n += 1
            if n == 5: return L[:k+1], L[k+1:]
    return L, []

def anchor(L, gaps):
    T = []; j = 0
    for i in L:
        if i.kind in ('dma', 'vload', 'vstore'):
            T.append((gaps[min(j, len(gaps)-1)], i)); j += 1
        else:
            g = gaps[j]-1 if j < len(gaps) else gaps[-1]
            T.append((max(g, 0), i))
    return T

def fill_gaps(mf, timed, per_gap=2):
    out = []; pend = list(timed)
    for k, m in enumerate(mf):
        out.append(m)
        n = 0; j = 0
        while n < per_gap and j < len(pend):
            if pend[j][0] <= k:
                out.append(pend.pop(j)[1]); n += 1
            else: j += 1
    out.extend(x[1] for x in pend)
    return out

s_ws = 14
def p2_tables(o):
    L = []; A = lambda x: L.append(mk(x))
    A(f"s_lshl_b32 s12, s{s_br}, 3"); A(f"s_add_u32 s12, s12, s{s_rt}"); A(f"s_mul_i32 s12, s12, {o.oblk}")
    A(f"s_mul_i32 s13, s3, {8*24576}"); A(f"s_add_u32 s{s_oo}, s12, s13")
    A(f"s_lshl_b32 s{s_wo2}, s3, 21"); A(f"s_lshl_b32 s12, s{s_ct}, 7"); A(f"s_add_u32 s{s_wo2}, s{s_wo2}, s12")
    if o.p2map == 'A':
        A(f"s_and_b32 s12, s{s_idx}, 3"); A(f"s_lshr_b32 s13, s{s_idx}, 2")
    else:
        A(f"s_and_b32 s12, s{s_idx}, 7"); A(f"s_lshr_b32 s13, s{s_idx}, 3")
    A(f"s_mul_i32 s12, s12, {o.p2rot_r}"); A(f"s_mul_i32 s13, s13, {o.p2rot_c}"); A(f"s_add_u32 s12, s12, s13")
    A(f"s_and_b32 s{s_ws}, s12, {o.R-1}")
    A("s_lshl_b32 s12, s3, 12")
    for k, base in enumerate((122880 + 5*4096, 16384, 73728, 32768, 98304, 0, 49152)):
        A(f"s_add_u32 s{S_SLOT[k]}, s12, {base}")
    return L
def p2_slots789():
    tab = [(90112, 94208, 114688), (118784, 65536, 69632), (122880, 126976, 131072), (135168, 139264, 159744)]
    L = []; A = lambda x: L.append(mk(x))
    for k in range(3): A(f"s_mov_b32 s{S_SLOT[7+k]}, {tab[0][k]}")
    for w in (1, 2, 3):
        A(f"s_cmp_eq_u32 s3, {w}")
        for k in range(3): A(f"s_cselect_b32 s{S_SLOT[7+k]}, {tab[w][k]}, s{S_SLOT[7+k]}")
    return L
S_WT = 20
def wtable_words(o):
    out = []
    for seq in o.wperm:
        w = [0]*8
        for l, k in enumerate(seq): w[l//6] |= k << (5*(l % 6))
        out.append(w)
    return out
def load_wtable(P, o):
    if o.wperm is None: return
    n = len(o.wperm)
    if o.w2d:
        if o.p2map == 'A': P(f"s_and_b32 s4, s{s_idx}, 3"); P(f"s_lshr_b32 s5, s{s_idx}, 2")
        else: P(f"s_and_b32 s4, s{s_idx}, 7"); P(f"s_lshr_b32 s5, s{s_idx}, 3")
        if o.w2d == 9: P(f"s_and_b32 s4, s5, {n-1}")
        else: P(f"s_mul_i32 s5, s5, {o.w2d}"); P("s_add_u32 s4, s4, s5"); P(f"s_and_b32 s4, s4, {n-1}")
    else: P(f"s_and_b32 s4, s{s_idx}, {n-1}")
    P("s_lshl_b32 s4, s4, 5")
    P("s_getpc_b64 s[6:7]")
    P("L_pc:")
    P("s_add_u32 s6, s6, L_wtab-L_pc"); P("s_addc_u32 s7, s7, 0")
    P("s_add_u32 s6, s6, s4"); P("s_addc_u32 s7, s7, 0")
    P("s_load_dwordx4 s[20:23], s[6:7], 0"); P("s_load_dwordx2 s[24:25], s[6:7], 16")
def actual_step(l, o, dst):
    if o.wperm is not None:
        return [mk(f"s_bfe_u32 {dst}, s{S_WT + l//6}, {hex((5 << 16) | (5*(l % 6)))}")]
    R = o.R
    L = [mk(f"s_add_u32 {dst}, s{s_ws}, {l & (R-1)}"), mk(f"s_and_b32 {dst}, {dst}, {R-1}")]
    blk = (l // R)*R
    if blk: L.append(mk(f"s_or_b32 {dst}, {dst}, {blk}"))
    return L

def kv_stage(c):
    if c < 3:
        kt = c
        w = [mk(f"ds_write_b128 v{V_KW}, {ar(A_KV+16*c+4*i,4)} offset:{i*4*K_STRIDE}") for i in range(4)]
        r = [mk(f"ds_read_b64 {ar(kf(kt,p)+2*j,2)}, v{V_KR} offset:{64*p + 32*j}") for p in range(4) for j in range(2)]
    else:
        kt = c - 3
        w = [mk(f"ds_write_b128 v{V_VW}, {ar(A_KV+16*c+4*i,4)} offset:{i*4*V_STRIDE}") for i in range(4)]
        r = [mk(f"ds_read_b64_tr_b16 {ar(vf(t)+2*kt,2)}, v{V_VR} offset:{32*t}") for t in range(8)]
    return w, r

def p1_main(P, o):
    kv = kv_loads(o)
    kvq = {}
    if o.kvmode == 'spread': kvq = {c: 2*c+1 for c in range(6)}
    else:
        for q, (a0, a1) in o.kvmode.items():
            for c in range(a0//4, (a1+3)//4): kvq[c] = q
    dsx = {}
    last = -1
    for c in range(6 if not o.vblocks else 3):
        w, r = kv_stage(c)
        nb = max(2*(kvq[c]+2)+1, last+2)
        dsx.setdefault(nb, []).extend(w); dsx.setdefault(nb+1, []).extend(r); last = nb
    assert last+1 <= 31, last
    tb = p2_tables(o)
    sal = {24: tb[:len(tb)//2], 25: tb[len(tb)//2:]}
    early = {27: [0], 28: [1], 29: [2], 30: [3], 31: [4]} if o.n_early == 5 else ({27: [0], 28: [1, 2]} if o.n_early == 3 else {})
    if o.n_early == 5: early = {27: [0, 1], 28: [2], 29: [3], 30: [4]}
    plan = {}
    delayed = getattr(o, 'delayed', ())
    for st in range(2 if o.pro == 1 else 3, 16):
        h1, h2 = split_dma(dma_stage(st, o))
        if st == 2: b1, b2 = (0, 0) if st not in delayed else (0, 1)
        else: b1, b2 = (2*st-5, 2*st-4) if st not in delayed else (2*st-4, 2*st-3)
        assert b2 <= 2*st-2
        plan.setdefault(b1, []).append((st, 0, h1)); plan.setdefault(b2, []).append((st, 1, h2))
    P.wait(vm="dma0"); P("s_barrier")
    stamp(P, o, 1)
    P.extend(frag_reads(0, 0))
    for s in range(16):
        for ss in range(2):
            n = 2*s + ss
            vm = []
            for (st, hf, L) in sorted(plan.get(n, []), key=lambda x: (x[0], x[1])): vm += L
            if ss == 0:
                P.wait(lgkm=0)
                f = frag_reads(s, 1)
                if o.kvmode == 'spread':
                    if s < 12: vm += kv[2*s:2*s+2]
                elif s in o.kvmode: a0, a1 = o.kvmode[s]; vm += kv[a0:a1]
            else:
                if s + 1 <= 15:
                    P.wait(vm=f"dma{s+1}", lgkm=0); P("s_barrier")
                    if o.stage_stamps and (s+1) % 2 == 0: stamp(P, o, (s+1)//2 + 1, True)
                else:
                    P.wait(lgkm=0)
                f = frag_reads(s+1, 0) if s+1 <= 15 else []
            if o.vblocks and n in o.vblocks: a0, a1 = o.vblocks[n]; vm = vm + kv[a0:a1]
            for l in early.get(n, []): vm = vm + wo_dma(l, o)
            nv = sum(1 for i in vm if i.kind in ('dma', 'vload'))
            gaps = [2 + (k*21)//max(nv,1) for k in range(nv)] if nv else [0]
            T = anchor(vm, gaps) + [((k*2)//3, i) for k, i in enumerate(f)] + [(11+k//2, i) for k, i in enumerate(dsx.get(n, []))]
            T += [(12 + k//2, i) for k, i in enumerate(sal.get(n, []))]
            if n == 31 and o.merge31:
                assert not T
                o.carry = mfma_block(s, ss)
            else:
                P.extend(fill_gaps(mfma_block(s, ss), T))
    if not o.merge31: P.wait(lgkm=0)
    if o.nob16:
        assert o.n_attn <= o.n_early and o.n_pre <= o.n_early and o.tr_attn == 0
    else:
        assert not o.merge31
        P("s_barrier")
    stamp(P, o, 9 if o.stage_stamps else 2, True)

def wo_dma(l, o):
    L = [mk(f"s_mov_b32 m0, s{S_SLOT[l % NSLOT]}")]
    L += actual_step(l, o, f"s{s_wcur}")
    L += [mk(f"s_lshl_b32 s{s_wcur}, s{s_wcur}, 16"), mk(f"s_add_u32 s{s_wcur}, s{s_wcur}, s{s_wo2}")]
    for j in range(4):
        L.append(mk(f"buffer_load_dwordx4 v{V2_WD+j}, {srd(sWO)}, s{s_wcur} offen offset:{j*1024} {o.nt_wo} lds", f"wo{l}"))
    return L
V2_TT = 4
def wo_tr(l):
    L = []
    for tn in range(4):
        L.append(mk(f"v_add_u32 v{V2_TT+tn}, s{S_SLOT[l % NSLOT]}, v{V2_TA+tn}"))
    for tn in range(4):
        for j in range(2):
            L.append(mk(f"ds_read_b64_tr_b16 {rq(woq(l, tn), 2*j, 2)}, v{V2_TT+tn} offset:{j*2048}", f"tr{l}"))
    return L

def softmax_chain(u):
    L = []
    S = [sa(kt, u) + r for kt in range(3) for r in range(4)]
    m = V_M + 4*u; t = m + 1; t2 = m + 2; t3 = m + 3
    A = lambda x: L.append(mk(x))
    A(f"v_max3_f32 v{m}, v{S[0]}, v{S[1]}, v{S[2]}")
    A(f"v_max3_f32 v{t}, v{S[3]}, v{S[4]}, v{S[5]}")
    A(f"v_max3_f32 v{t2}, v{S[6]}, v{S[7]}, v{S[8]}")
    A(f"v_max3_f32 v{t3}, v{S[9]}, v{S[10]}, v{S[11]}")
    A(f"v_max3_f32 v{m}, v{m}, v{t}, v{t2}")
    A(f"v_max_f32 v{m}, v{m}, v{t3}")
    for sw in ("v_permlane16_swap_b32", "v_permlane32_swap_b32"):
        A(f"v_mov_b32 v{t}, v{m}")
        A(f"{sw} v{m}, v{t}")
        A(f"v_max_f32 v{m}, v{m}, v{t}")
    A(f"v_mul_f32 v{m}, s{s_cs}, v{m}")
    for x in S: A(f"v_fma_f32 v{x}, v{x}, s{s_cs}, -v{m}")
    for x in S: A(f"v_exp_f32 v{x}, v{x}")
    A(f"v_add_f32 v{t}, v{S[0]}, v{S[1]}")
    A(f"v_add_f32 v{t2}, v{S[2]}, v{S[3]}")
    A(f"v_add_f32 v{t3}, v{S[4]}, v{S[5]}")
    A(f"v_add_f32 v{m}, v{S[6]}, v{S[7]}")
    A(f"v_add_f32 v{t}, v{t}, v{S[8]}")
    A(f"v_add_f32 v{t2}, v{t2}, v{S[9]}")
    A(f"v_add_f32 v{t3}, v{t3}, v{S[10]}")
    A(f"v_add_f32 v{m}, v{m}, v{S[11]}")
    A(f"v_add_f32 v{t}, v{t}, v{t2}")
    A(f"v_add_f32 v{m}, v{m}, v{t3}")
    A(f"v_add_f32 v{m}, v{m}, v{t}")
    for sw in ("v_permlane16_swap_b32", "v_permlane32_swap_b32"):
        A(f"v_mov_b32 v{t}, v{m}")
        A(f"{sw} v{m}, v{t}")
        A(f"v_add_f32 v{m}, v{m}, v{t}")
    A(f"v_rcp_f32 v{m}, v{m}")
    for x in S: A(f"v_mul_f32 v{x}, v{x}, v{m}")
    for k in range(6):
        A(f"v_cvt_pk_bf16_f32 v{pb(u)+k}, v{S[2*k]}, v{S[2*k+1]}")
    return L

def attention(P, o):
    L = list(getattr(o, 'carry', [])) if o.merge31 else []
    A = lambda x, tag=None: L.append(mk(x, tag))
    for p in range(4): A(f"s_add_u32 s{s_t0+p}, s{s_ooff}, {p*6144}")
    for u in range(3):
        for p in range(4):
            for hf in range(2):
                a0 = acc(2*p+hf, u)
                A(f"v_cvt_pk_bf16_f32 v{qb(u,p)+2*hf}, v{a0}, v{a0+1}")
                A(f"v_cvt_pk_bf16_f32 v{qb(u,p)+2*hf+1}, v{a0+2}, v{a0+3}")
    for u in range(3):
        for p in range(4):
            for kt in range(3):
                c = "0" if p == 0 else vr(sa(kt,u),4)
                A(f"v_mfma_f32_16x16x32_bf16 {vr(sa(kt,u),4)}, {ar(kf(kt,p),4)}, {vr(qb(u,p),4)}, {c}")
    for u in range(3): L.extend(softmax_chain(u))
    rel = {}; edges = []
    if o.vblocks:
        assert o.n_attn <= 7 and o.n_pre <= 7 and o.tr_attn == 0
        prev = None
        for c in (3, 4, 5):
            w, r = kv_stage(c)
            for i in w:
                rel[len(L)] = o.vrel + (c-3)*o.vstep; L.append(i)
                if prev:
                    for j in prev: edges.append((j, i, 0))
            for i in r:
                L.append(i)
                for j in w: edges.append((j, i, 20))
            prev = r
    for u in range(3):
        for t in range(8):
            A(f"v_mfma_f32_16x16x32_bf16 {vr(acc(t,u),4)}, {ar(vf(t),4)}, {vr(pb(u),4)}, 0")
        for t in range(8):
            A(f"v_mfma_f32_16x16x16_bf16 {vr(acc(t,u),4)}, {ar(vf(t)+4,2)}, {vr(pb(u)+4,2)}, {vr(acc(t,u),4)}")
    for u in range(3):
        for p in range(4):
            for hf in range(2):
                a0 = acc(2*p+hf, u)
                A(f"v_cvt_pk_bf16_f32 v{qb(u,p)+2*hf}, v{a0}, v{a0+1}")
                A(f"v_cvt_pk_bf16_f32 v{qb(u,p)+2*hf+1}, v{a0+2}, v{a0+3}")
            A(f"buffer_store_dwordx4 {vr(qb(u,p),4)}, v{V_L16}, {srd(sWS)}, s{s_t0+p} offen offset:{u*1024} {o.o_sc}", "ost")
    items = []
    ne = o.n_early
    groups = [('d', l) for l in range(ne, o.n_attn)]
    seq = []
    t_list = list(range(o.tr_attn))
    while groups or t_list:
        if groups: seq.append(groups.pop(0))
        if t_list: seq.append(('t', t_list.pop(0)))
    nslots = len(seq); prev_tr = None
    for k, (kind, l) in enumerate(seq):
        t0 = (k*o.attn_span)//max(nslots, 1)
        if kind == 'd':
            D = wo_dma(l, o); nd = 0
            for i in D:
                rel[len(L)] = t0 + (nd*o.attn_span)//(4*max(nslots,1)) ; L.append(i)
                if i.kind == 'dma': nd += 1
        else:
            wv = mkwait(vm=f"wo{l}", soft=True); rel[len(L)] = t0; L.append(wv)
            T = wo_tr(l)
            for i in T:
                rel[len(L)] = t0; L.append(i)
                if i.kind == 'dsread': edges.append((wv, i, 0))
            if prev_tr is not None:
                for i in T[:4]:
                    for j in prev_tr: edges.append((j, i, 0))
            prev_tr = [i for i in T if i.kind == 'dsread']
            wl = mkwait(lgkm=f"tr{l}", soft=True); rel[len(L)] = t0 + 160; L.append(wl)
            for i in prev_tr: edges.append((i, wl, 100))
            D = wo_dma(l+10, o)
            for i in D:
                rel[len(L)] = t0 + 160; L.append(i)
                if i.kind == 'dma': edges.append((wl, i, 0))
    def sink(i):
        if i.kind == 'vstore' and o.stag:
            m = re.search(r'offset:(\d+)', i.text); u = int(m.group(1))//1024
            return (2-u)*o.stag
        return 0
    order = list_schedule(L, release=rel, verbose=o.verbose, edges=edges, sink_lat=sink, mfma_first=o.mfma_first)
    P.extend(order)
    stamp(P, o, 3)

def gap(P, o):
    issued = set(range(max(o.n_early, o.n_attn))) | {l+10 for l in range(o.tr_attn)}
    def dma(l):
        if l not in issued and l < o.nreg + 10:
            P.extend(wo_dma(l, o)); issued.add(l)
    for l in range(o.n_pre): dma(l)
    assert o.tr_pre <= max(o.n_early, o.n_attn) and not (o.tr_pre and o.tr_attn)
    for l in range(o.tr_pre):
        P.wait(vm=f"wo{l}")
        P.extend(wo_tr(l))
    P.wait(vm=0 if o.drain else "ost")
    stamp(P, o, 4)
    if o.tr_pre: P.wait(lgkm=0)
    P("s_barrier").note = 'publish'
    P("s_cmp_lg_u32 s3, 0")
    P("s_cbranch_scc1 L_nosig")
    P("v_mov_b32 v1, 1"); P("v_mov_b32 v2, 0")
    P("s_mov_b64 exec, 1")
    P(f"buffer_atomic_add v1, v2, {srd(sDBG)}, s{s_sig} offen sc1").note = 'slowpath'
    P("s_mov_b64 exec, -1")
    P("L_nosig:")
    P("v_mov_b32 v2, 0")
    for l in range(10): dma(l)
    for l in range(o.tr_pre):
        P.wait(lgkm=f"tr{l}"); dma(l+10)
    def poll_load(): P(f"buffer_load_dword v1, v2, {srd(sDBG)}, s{s_poll} offen sc1", "poll")
    for l in range(max(o.tr_attn, o.tr_pre), o.nreg):
        if l == o.poll_at: poll_load()
        P.wait(vm=f"wo{l}")
        P.extend(wo_tr(l))
        if l >= 1:
            P.wait(lgkm=f"tr{l-1}")
            dma(l-1+10)
    P.wait(lgkm=f"tr{o.nreg-1}"); dma(o.nreg+9)
    stamp(P, o, 5)
    if o.poll_at >= o.nreg: poll_load()
    P.wait(vm="poll")
    P("v_readfirstlane_b32 s4, v1")
    P("s_cmp_ge_u32 s4, 8")
    P("s_cbranch_scc1 L_polldone")
    P("s_mov_b32 s5, 0")
    P("L_poll:")
    P(f"buffer_load_dword v1, v2, {srd(sDBG)}, s{s_poll} offen sc1").note = 'slowpath'
    i = Inst("s_waitcnt vmcnt(0)"); i.note = 'slowpath'; P.add(i)
    P("v_readfirstlane_b32 s4, v1")
    P("s_add_u32 s5, s5, 1")
    P("s_cmp_gt_u32 s5, 0x40000")
    P("s_cbranch_scc1 L_polldone")
    P("s_cmp_lt_u32 s4, 8")
    P("s_cbranch_scc1 L_poll")
    P("L_polldone:")
    stamp(P, o, 6)

def o_load(i, f, o):
    r = V2_O + (i % o.DO)*24 + f*4
    sreg = s_t0 + (i & 1)*2 + (1 if f >= 4 else 0)
    return mk(f"buffer_load_dwordx4 {vr(r,4)}, v{V_L16}, {srd(sWS)}, s{sreg} offen offset:{(f if f < 4 else f-4)*1024} {o.o_ld}", f"o{i}")
def o_soff(i, o):
    b = s_t0 + (i & 1)*2
    L = actual_step(i, o, f"s{b}")
    L += [mk(f"s_mul_i32 s{b}, s{b}, 6144"), mk(f"s_add_u32 s{b}, s{b}, s{s_oo}"), mk(f"s_add_u32 s{b+1}, s{b}, 4096")]
    return L

def p2_main(P, o):
    DO = o.DO
    for i in range(DO):
        P.extend(o_soff(i, o))
        for f in range(6): P.add(o_load(i, f, o))
    P("v_lshrrev_b32 v1, 3, v0"); P("v_lshrrev_b32 v2, 4, v0"); P("v_and_b32 v3, 15, v0"); P("v_and_b32 v4, 7, v0")
    P(f"s_mul_i32 s4, s3, {RED_WAVE}")
    P(f"v_mul_u32_u24 v5, {RED_STRIDE}, v3"); P("v_lshl_add_u32 v5, v2, 4, v5"); P(f"v_add_u32 v{V2_RW}, s4, v5")
    P(f"s_mul_i32 s4, s3, {24*RED_STRIDE}")
    P(f"v_mul_u32_u24 v5, {RED_STRIDE}, v1"); P("v_lshl_add_u32 v5, v4, 5, v5"); P(f"v_add_u32 v{V2_RR}, s4, v5")
    P(f"v_add_u32 v{V2_RR+1}, {2*RED_WAVE}, v{V2_RR}")
    P("v_lshlrev_b32 v5, 12, v1"); P(f"v_lshl_add_u32 v{V2_OUT}, v4, 4, v5")
    P(f"s_mul_i32 s{s_outoff}, s{s_rt}, {96*4096}"); P(f"s_lshl_b32 s4, s{s_br}, 11"); P(f"s_add_u32 s{s_outoff}, s{s_outoff}, s4")
    P(f"s_lshl_b32 s4, s{s_ct}, 7"); P(f"s_add_u32 s{s_outoff}, s{s_outoff}, s4")
    P(f"s_mul_i32 s4, s3, {24*4096}"); P(f"s_add_u32 s{s_outoff}, s{s_outoff}, s4")
    for i in range(32):
        if i >= o.nreg: P.wait(lgkm=0)
        if i == 31 and o.tail2: P("s_barrier")
        mf = []
        for f in range(6):
            for tn in range(4):
                c = "0" if i == 0 else vr(acc2(tn,f),4)
                mf.append(mk(f"v_mfma_f32_16x16x32_bf16 {vr(acc2(tn,f),4)}, {rq(woq(i, tn), 0, 4)}, {vr(V2_O+(i%DO)*24+f*4,4)}, {c}"))
        if o.p2exp == 'nomfma': mf = [mk(f"v_mov_b32 v{8+k}, v{V2_O+(i%DO)*24+(k//4)*4}") for k in range(24)]
        T = []
        if i+DO < 32: T += [(0, x) for x in o_soff(i+DO, o)]
        if o.nreg <= i+1 < 32:
            T.append((1, mkwait(vm=f"wo{i+1}")))
            T += [(1, x) for x in wo_tr(i+1)]
        if i+DO < 32 and o.p2exp != 'noload': T += [(4*f+3, o_load(i+DO, f, o)) for f in range(6)]
        if o.nreg <= i < 22:
            T += [(5+2*k, x) for k, x in enumerate(wo_dma(i+10, o))]
        if i == 31 and o.tail2:
            T += [(min(4*f+tn+5, 23), mk(f"ds_write_b128 v{V2_RW}, {vr(acc2(tn,f),4)} offset:{f*16*RED_STRIDE + tn*64}")) for f in range(6) for tn in range(4) if 4*f+tn+5 <= 23]
        P.extend(fill_gaps(mf, T))
    stamp(P, o, 7)

def p2_epilogue(P, o):
    if not o.tail2: P("s_barrier")
    for f in range(6):
        for tn in range(4):
            if o.tail2 and 4*f+tn+5 <= 23: continue
            P(f"ds_write_b128 v{V2_RW}, {vr(acc2(tn,f),4)} offset:{f*16*RED_STRIDE + tn*64}")
    P.wait(lgkm=0); P("s_barrier")
    for i in range(3):
        for wv in range(4):
            for h in range(2):
                P(f"ds_read_b128 {vr(V2_R + (i*4+wv)*8 + 4*h, 4)}, v{V2_RR + (wv>>1)} offset:{(wv&1)*RED_WAVE + i*8*RED_STRIDE + 16*h}")
    for i in range(3):
        b = V2_R + i*32
        for e in range(8):
            P(f"v_add_f32 v{b+e}, v{b+e}, v{b+8+e}")
            P(f"v_add_f32 v{b+16+e}, v{b+16+e}, v{b+24+e}")
        for e in range(8): P(f"v_add_f32 v{b+e}, v{b+e}, v{b+16+e}")
        for e in range(4): P(f"v_cvt_pk_bf16_f32 v{b+e}, v{b+2*e}, v{b+2*e+1}")
        P(f"s_add_u32 s4, s{s_outoff}, {i*8*4096}")
        P(f"buffer_store_dwordx4 {vr(b,4)}, v{V2_OUT}, {srd(sOUT)}, s4 offen {o.out_sc}")
    stamp(P, o, 8)

def write_stamps(P, o, n):
    if not o.stamps: return
    P.wait(lgkm=0)
    P("v_mov_b32 v1, 0")
    for j in range(2*n): P(f"v_writelane_b32 v1, s{S_STAMP+j}, {j}")
    P("s_lshl_b32 s4, s2, 2"); P("s_add_u32 s4, s4, s3"); P("s_lshl_b32 s4, s4, 7"); P(f"s_add_u32 s4, s4, {STAMP_OFF}")
    P("v_lshlrev_b32 v2, 2, v0")
    P(f"s_mov_b64 exec, {hex((1<<(2*n))-1)}")
    P(f"buffer_store_dword v1, v2, {srd(sWS)}, s4 offen")
    P("s_mov_b64 exec, -1")

def kernel_text(name, insts):
    return f""".text
.globl {name}
.p2align 8
.type {name},@function
{name}:
{text_of(insts)}
.section .rodata,"a"
.p2align 6
.amdhsa_kernel {name}
  .amdhsa_next_free_vgpr 512
  .amdhsa_next_free_sgpr 102
  .amdhsa_accum_offset 256
  .amdhsa_group_segment_fixed_size 0
  .amdhsa_kernarg_size 104
  .amdhsa_user_sgpr_count 2
  .amdhsa_user_sgpr_kernarg_segment_ptr 1
  .amdhsa_system_sgpr_workgroup_id_x 1
.end_amdhsa_kernel
.text
"""

def gen_kernel(name, o):
    NREG[0] = o.nreg; ARCH0[0] = V2_O + 24*o.DO; MORDER[0] = o.morder
    assert ARCH0[0] + 16*(o.nreg-16) <= 256
    P = Prog()
    P("L_start:")
    prologue(P, o)
    p1_scalar(P, o)
    p1_vector_a(P)
    build_srds(P)
    if o.pro_stamps: stamp(P, o, 3, True)
    for s in range(3 if o.pro == 0 else 1):
        P.extend(dma_stage(s, o))
        if o.pro_stamps: stamp(P, o, 4+s, True)
    if o.ctouch == 1: code_touch(P, o)
    build_srds2(P)
    p1_scalar2(P, o)
    load_wtable(P, o)
    p1_vector_b(P)
    if o.pro >= 1: P.extend(dma_stage(1, o))
    if o.pro == 2: P.extend(dma_stage(2, o))
    if o.touch:
        P("v_mov_b32 v7, 0")
        P("s_lshl_b32 s4, s3, 21")
        P(f"buffer_load_dword v254, v7, {srd(sWO)}, s4 offen", "touch")
        P(f"s_mul_i32 s4, s{s_rt}, {96*4096}")
        P(f"buffer_load_dword v254, v7, {srd(sOUT)}, s4 offen", "touch")
        if o.touch >= 2:
            P(f"buffer_load_dword v254, v7, {srd(sK)}, s{s_kvoff} offen", "touch")
            P(f"buffer_load_dword v254, v7, {srd(sV)}, s{s_kvoff} offen", "touch")
        if o.touch >= 3:
            assert o.oblk == 1 << 20
            P(f"s_and_b32 s4, s{s_ooff}, 0xfff00000"); P("s_add_u32 s4, s4, 0xc0000")
            P(f"buffer_load_dword v254, v7, {srd(sWS)}, s4 offen", "touch")
            P(f"s_lshl_b32 s4, s{s_br}, 3"); P(f"s_add_u32 s4, s4, s{s_rt}"); P("s_lshl_b32 s4, s4, 20"); P("s_add_u32 s4, s4, 0xc0000")
            P(f"buffer_load_dword v254, v7, {srd(sWS)}, s4 offen", "touch")
    if o.pro_stamps: stamp(P, o, 7, True)
    if o.upto >= 1:
        if isinstance(o.kvmode, list):
            P(f"s_mul_i32 s4, s{s_bg}, {o.phi[0]}"); P(f"s_lshr_b32 s5, s{s_idx}, 2"); P(f"s_mul_i32 s5, s5, {o.phi[1]}")
            P("s_add_u32 s4, s4, s5"); P("s_and_b32 s4, s4, 3")
            modes = o.kvmode
            for ph in (1, 2, 3):
                P(f"s_cmp_eq_u32 s4, {ph}"); P(f"s_cbranch_scc1 L_var{ph}")
            for ph in range(4):
                if ph: P(f"L_var{ph}:")
                o.kvmode = modes[ph]
                o.delayed = o.delay_sets[ph] if o.delay_sets else ()
                Q = Prog(); p1_main(Q, o)
                sub = resolve_waits(Q.insts + [mkwait(vm=None, lgkm=None)])
                P.add(Inst(".variant_begin")); P.extend(Q.insts); P.add(Inst(".variant_end"))
                if ph < 3: P("s_branch L_varjoin")
            P("L_varjoin:")
            o.kvmode = modes
        else:
            p1_main(P, o)
    if o.upto >= 2: attention(P, o)
    if o.upto >= 3: gap(P, o)
    if o.upto >= 4:
        p2_main(P, o)
        p2_epilogue(P, o)
    if o.endwait or o.stamps: P.wait(vm=0)
    stamp(P, o, 9)
    write_stamps(P, o, 10)
    if o.endwait or o.stamps: P.wait(vm=0)
    P("L_exit:")
    P("s_endpgm")
    if o.wperm is not None:
        P(".p2align 6"); P("L_wtab:")
        for w in wtable_words(o): P(".long " + ", ".join(hex(x) for x in w))
    insts, nops = finalize(P)
    for ta in (False, True):
        for ts in (False, True):
            bad = verify_counters(insts, ta, ts)
            assert not bad, (name, ta, ts, bad[:5])
    txt = kernel_text(name, insts)
    txt = txt.replace(".variant_begin", "").replace(".variant_end", "")
    for lab in ("L_exit", "L_nosig", "L_polldone", "L_poll", "L_var1", "L_var2", "L_var3", "L_varjoin", "L_pc", "L_wtab", "L_pc2", "L_start"):
        txt = re.sub(r'\b' + lab + r'\b', lab + "_" + name[-24:], txt)
    return txt, len(insts), nops

def pioneer_perm(L, period=4, n=16):
    out = []
    for phi in range(period):
        left = list(range(n)); seq = []
        for t in range(n):
            k = t + L if (t % period == phi and t + L in left) else left[0]
            left.remove(k); seq.append(k)
        out.append(seq)
    return out

HEADER = """; concat_heads( MHA block , GQA block ):  out[:, :, 0:1024] = branch A, out[:, :, 1024:2048] = branch B,
"""
def final_file(o):
    t, n, _ = gen_kernel(KNAME, o)
    return HEADER + "; @launch grid=(256,1,1) block=(256,1,1) lds=163840\n" + '.amdgcn_target "amdgcn-amd-amdhsa--gfx950"\n' + t

def build(V, fn="fx"):
    from hipmini import metadata, assemble
    s = '.amdgcn_target "amdgcn-amd-amdhsa--gfx950"\n'; ks = []
    for n, o in V.items():
        t, ni, nops = gen_kernel(n, o); s += t; ks.append((n, 102, 512, 256))
    s += metadata(ks, 13)
    open(f"work/{fn}.s", "w").write(s); assemble(f"work/{fn}.s", f"work/{fn}.co"); print(" ".join(V), ni, nops)

if __name__ == "__main__":
    V = {}
    def k6(*st): return {q:(4*i,4*i+4) for i, q in enumerate(st)}
    base = dict(stamps=True, nt_kv="nt", tail2=True, stag=300, out_sc="sc1", n_early=5, n_attn=5, n_pre=5,
            perm=pioneer_perm(3), hmap=1, mfma_first=True, cmap=1, pro=1, kvmode=k6(2,4,6,8,10,12), p2map='B', R=8, p2rot_c=0, p2rot_r=1)
    for clk, nm in (("s_memrealtime", "t"), ("s_memtime", "c")):
        V[f"{nm}_full"] = Opt(**base, nreg=20, DO=2, poll_at=19, clk=clk)
        V[f"{nm}_nomfma"] = Opt(**base, nreg=20, DO=2, poll_at=19, clk=clk, p2exp='nomfma')
        V[f"{nm}_noload"] = Opt(**base, nreg=20, DO=2, poll_at=19, clk=clk, p2exp='noload')
        V[f"{nm}_D3"] = Opt(**base, nreg=18, DO=3, poll_at=17, clk=clk)
    build(V)
```

```python
from g3 import *
from mkfinal import FINAL, k6
U = {**FINAL, "morder": 'u', "nob16": True, "merge31": True, "stag": 600}
V = {"e_m": Opt(**U), "e_tp3": Opt(**U, tr_pre=3), "e_tp3p19": Opt(**{**U, "poll_at": 19}, tr_pre=3), "e_tp5": Opt(**U, tr_pre=5), "e_tp5p19": Opt(**{**U, "poll_at": 19}, tr_pre=5), "e_mp19": Opt(**{**U, "poll_at": 19})}
build(V, "ev")
```

```python
import sys, math, re, struct
from asmgen import *

KNAME = "concat_heads__mha_block_cached__gqa_block_cached__near_ridge_kernel"
STAMP_OFF = 16 << 20

sX, sWQ, sK, sV, sWS, sWO, sOUT, sDBG = 32, 36, 40, 44, 48, 52, 56, 60
S_TO, S_TW = 32, 40
s_br, s_h, s_b, s_bg, s_hg, s_idx = 26, 27, 28, 29, 30, 31
s_xoff, s_woff, s_kvoff, s_ooff, s_mx, s_mw = 64, 65, 66, 67, 68, 69
s_t0 = 70
s_kb = 74; s_m2 = 75; s_cs = 76
s_st, s_xb, s_wb = 77, 78, 79
s_pm2 = 75
s_wcur = 15; s_outoff = 78; s_oo = 8; s_wo2 = 9
S_SLOT = [40, 41, 42, 43, 66, 74, 17, 10, 11, 16]
s_rt, s_ct = 18, 19
s_sig, s_poll = 100, 101
S_STAMP = 80

def srd(n): return f"s[{n}:{n+3}]"
def vr(n, c=1): return f"v{n}" if c == 1 else f"v[{n}:{n+c-1}]"
def ar(n, c=1): return f"a{n}" if c == 1 else f"a[{n}:{n+c-1}]"
def f32bits(x): return hex(struct.unpack('<I', struct.pack('<f', x))[0])

class Opt:
    def __init__(self, **kw):
        self.nt_x = ""; self.nt_w = ""; self.nt_kv = ""; self.nt_wo = ""; self.o_sc = "sc1"; self.o_ld = "sc1"; self.out_sc = ""
        self.stamps = False; self.clk = 's_memrealtime'; self.stage_stamps = False
        self.rot = False; self.rb = 8; self.rot_bg = 2; self.rot_h = 1; self.kvmode = 'spread'
        self.p2map = 'A'; self.p2rot_c = 1; self.p2rot_r = 2
        self.n_attn = 10
        self.attn_span = 2600
        self.DO = 3; self.n_pre = 10; self.upto = 9; self.tr_pre = 0; self.merge31 = False; self.nob16 = False; self.morder = 't'; self.ctn = 3; self.ctouch = False; self.p2exp = ''; self.vrel = 100; self.vstep = 150; self.vblocks = None; self.delay_sets = None; self.oblk = 32*24576; self.pro = 0; self.pro_stamps = False; self.w2d = 0; self.xor = 0; self.drain = True; self.perm_ws = False; self.hmap = 0; self.cmap = 0; self.touch = False; self.pk = False; self.mfma_first = False; self.nreg = 16; self.tail2 = False; self.stag = 0; self.endwait = True; self.wperm = None; self.perm = None; self.phi = (1, 3); self.R = 8; self.n_mid = 0; self.n_early = 5; self.tr_attn = 0; self.poll_at = 16
        self.verbose = False
        self.__dict__.update(kw)

def stamp(P, o, i, stage=False):
    if o.stamps and (stage or not o.stage_stamps or i <= 1): P(f"{o.clk} s[{S_STAMP+2*i}:{S_STAMP+2*i+1}]")

ACC = 8
def acc(t, u): return ACC + (t*3 + u)*4
V_X, V_W, V_TA, V_XR, V_L16 = 104, 110, 114, 122, 124
V_KW, V_VW, V_KR, V_VR = 125, 126, 127, 128
V2_WD, V2_TA = 130, 134
QB = 140
def qb(u, p): return QB + (u*4 + p)*4
SA = 188
def sa(kt, u): return SA + (u*3 + kt)*4
PB = 224
def pb(u): return PB + u*6
V_M = 242
A_KV = 0
def kf(kt, p): return A_KV + (kt*4 + p)*4
def vf(t): return 184 + t*6
A_FA, A_FB = 96, 160
def fa(buf, t): return A_FA + buf*32 + t*4
def fb(buf, u): return A_FB + buf*12 + u*4
LDS_W, LDS_X = 0, 49152
K_STRIDE, V_STRIDE = 272, 288
KV_BASE = [122880 + w*4608 for w in range(4)]
def acc2(tn, f): return 8 + (f*4 + tn)*4
V2_O = 140
V2_RW, V2_RR, V2_OUT = 104, 105, 107
V2_R = 132
_Q1 = list(range(48, 184, 4)) + list(range(232, 256, 4))
_Q2 = list(range(0, 48, 4)) + list(range(184, 232, 4))
NREG = [16]; ARCH0 = [188]
def woq(l, tn):
    if l < 10: return ('a', _Q1[4*l + tn])
    if l < 16: return ('a', _Q2[4*(l-10) + tn])
    if l < NREG[0]: return ('v', ARCH0[0] + 16*(l-16) + 4*tn)
    return ('a', _Q1[4*(l & 1) + tn])
def rq(q, off, n): return f"{q[0]}[{q[1]+off}:{q[1]+off+n-1}]"
NSLOT = 10
RED_STRIDE = 272; RED_WAVE = 96*272

def prologue(P, o):
    P("s_cmp_ge_u32 s2, 0x100")
    P("s_cbranch_scc1 L_exit")
    if o.ctouch == 3:
        P("v_lshrrev_b32 v1, 6, v0"); P("v_and_b32 v2, 63, v0")
        P("s_getpc_b64 s[18:19]")
        P("L_pc2:")
        P("s_lshr_b32 s4, s2, 3"); P(f"s_mul_i32 s4, s4, {128*4*o.ctn}")
        P(f"v_mul_u32_u24 v1, {128*o.ctn}, v1"); P("v_lshl_add_u32 v7, v2, 7, v1"); P("v_add_u32 v7, s4, v7")
        P("v_min_u32 v7, L_exit-L_pc2, v7")
        P(f"s_mov_b64 exec, {(1 << o.ctn) - 1}")
        P("global_load_dword v254, v7, s[18:19]", "touch")
        P("s_mov_b64 exec, -1")
    if o.xor: P(f"s_xor_b32 s2, s2, {o.xor}")
    stamp(P, o, 0)
    P("v_lshrrev_b32 v1, 6, v0")
    P("s_and_b32 s4, s2, 7")
    P("v_readfirstlane_b32 s3, v1")
    P(f"s_lshr_b32 s{s_br}, s4, 2")
    P(f"s_and_b32 s{s_hg}, s4, 3")
    P(f"s_lshr_b32 s{s_idx}, s2, 3")
    P(f"s_mul_i32 s5, s{s_br}, 40")
    P("s_add_u32 s6, s0, s5")
    P("s_addc_u32 s7, s1, 0")
    P("s_load_dwordx8 s[8:15], s[6:7], 0")
    P("s_load_dwordx2 s[16:17], s[6:7], 32")
    P("s_load_dwordx4 s[20:23], s[0:1], 80")
    P("s_load_dwordx2 s[24:25], s[0:1], 96")
    P("v_and_b32 v0, 63, v0")
    if o.ctouch == 2: code_touch(P, o)

def code_touch(P, o):
    P("s_getpc_b64 s[18:19]")
    P("L_pc2:")
    P("s_sub_u32 s18, s18, L_pc2-L_start"); P("s_subb_u32 s19, s19, 0")
    P(f"s_lshl_b32 s4, s{s_idx}, 2"); P("s_add_u32 s4, s4, s3"); P(f"s_mul_i32 s4, s4, {128*o.ctn}")
    P("v_lshl_add_u32 v7, v0, 7, s4")
    P("v_min_u32 v7, L_exit-L_start, v7")
    P(f"s_mov_b64 exec, {(1 << o.ctn) - 1}")
    P("global_load_dword v254, v7, s[18:19]", "touch")
    P("s_mov_b64 exec, -1")

def build_srds(P):
    P.wait(lgkm=0)
    def one(n, lo, size):
        P(f"s_mov_b32 s{n}, s{lo}"); P(f"s_and_b32 s{n+1}, s{lo+1}, 0xffff")
        P(f"s_mov_b32 s{n+2}, {size}"); P(f"s_mov_b32 s{n+3}, 0x20000")
    one(sWQ, 14, 1024*4096*2); one(sX, 8, 16*48*1024*2)

def build_srds2(P):
    def one(n, lo, size):
        P(f"s_mov_b32 s{n}, s{lo}"); P(f"s_and_b32 s{n+1}, s{lo+1}, 0xffff")
        P(f"s_mov_b32 s{n+2}, {size}"); P(f"s_mov_b32 s{n+3}, 0x20000")
    one(sK, 10, 16*32*48*128*2); one(sV, 12, 16*32*48*128*2)
    one(sWO, 16, 4096*1024*2); one(sOUT, 20, 16*48*2048*2)
    one(sDBG, 22, 256); one(sWS, 24, 268435456)

def p1_scalar(P, o):
    P(f"s_and_b32 s{s_bg}, s{s_idx}, 3")
    P(f"s_lshr_b32 s4, s{s_idx}, 2")
    if o.hmap == 0:
        P(f"s_lshl_b32 s{s_h}, s{s_hg}, 3")
        P(f"s_add_u32 s{s_h}, s{s_h}, s4")
    else:
        P(f"s_lshl_b32 s{s_h}, s4, 2")
        P(f"s_add_u32 s{s_h}, s{s_h}, s{s_hg}")
    P(f"s_lshl_b32 s{s_b}, s{s_bg}, 2")
    P(f"s_add_u32 s{s_b}, s{s_b}, s3")
    P(f"s_mul_i32 s{s_xoff}, s{s_b}, {48*2048}")
    P(f"s_lshl_b32 s4, s3, 17")
    P(f"s_lshl_b32 s{s_woff}, s{s_h}, 8")
    P(f"s_add_u32 s{s_woff}, s{s_woff}, s4")
    P(f"s_mul_i32 s{s_mx}, s3, 6144"); P(f"s_add_u32 s{s_mx}, s{s_mx}, {LDS_X}")
    P(f"s_lshl_b32 s{s_mw}, s3, 12")
    if o.perm is not None:
        P(f"s_mul_i32 s4, s{s_bg}, {o.phi[0]}"); P(f"s_lshr_b32 s5, s{s_idx}, 2"); P(f"s_mul_i32 s5, s5, {o.phi[1]}")
        P("s_add_u32 s4, s4, s5"); P("s_and_b32 s4, s4, 3")
        if o.perm_ws:
            P.wait(lgkm=0)
            P("s_lshl_b32 s4, s4, 3"); P(f"s_add_u32 s4, s4, {20 << 20}")
            P("s_add_u32 s6, s24, s4"); P("s_addc_u32 s7, s25, 0")
            P("s_load_dwordx2 s[18:19], s[6:7], 0")
            P.wait(lgkm=0)
            P(f"s_mov_b32 s{s_st}, s18"); P(f"s_mov_b32 s{s_pm2}, s19")
        else:
            words = [sum(k << (4*i) for i, k in enumerate(p)) for p in o.perm]
            P(f"s_mov_b32 s{s_st}, {words[0] & 0xffffffff}"); P(f"s_mov_b32 s{s_pm2}, {words[0] >> 32}")
            for ph in (1, 2, 3):
                P(f"s_cmp_eq_u32 s4, {ph}")
                P(f"s_cselect_b32 s{s_st}, {words[ph] & 0xffffffff}, s{s_st}"); P(f"s_cselect_b32 s{s_pm2}, {words[ph] >> 32}, s{s_pm2}")
        P(f"s_mov_b32 s{s_xb}, s{s_xoff}"); P(f"s_mov_b32 s{s_wb}, s{s_woff}")
        P(f"s_and_b32 s4, s{s_st}, 15")
        P(f"s_lshl_b32 s5, s4, 7"); P(f"s_add_u32 s{s_xoff}, s{s_xb}, s5")
        P(f"s_lshl_b32 s4, s4, 19"); P(f"s_add_u32 s{s_woff}, s{s_wb}, s4")
    elif o.rot:
        P(f"s_mul_i32 s4, s{s_bg}, {o.rot_bg}"); P(f"s_lshr_b32 s5, s{s_idx}, 2"); P(f"s_mul_i32 s5, s5, {o.rot_h}")
        P(f"s_add_u32 s{s_st}, s4, s5"); P(f"s_and_b32 s{s_st}, s{s_st}, {o.rb-1}")
        P(f"s_mov_b32 s{s_xb}, s{s_xoff}"); P(f"s_mov_b32 s{s_wb}, s{s_woff}")
        P(f"s_lshl_b32 s4, s{s_st}, 7"); P(f"s_add_u32 s{s_xoff}, s{s_xb}, s4")
        P(f"s_lshl_b32 s4, s{s_st}, 19"); P(f"s_add_u32 s{s_woff}, s{s_wb}, s4")

def p1_scalar2(P, o):
    P(f"s_lshl_b32 s4, s{s_b}, 5"); P(f"s_add_u32 s4, s4, s{s_h}")
    P(f"s_mul_i32 s{s_kvoff}, s4, 12288")
    P(f"s_lshl_b32 s4, s{s_br}, 3"); P(f"s_lshr_b32 s5, s{s_b}, 1"); P("s_add_u32 s4, s4, s5")
    P(f"s_mul_i32 s4, s4, {o.oblk}"); P(f"s_mul_i32 s{s_ooff}, s{s_h}, 24576"); P(f"s_add_u32 s{s_ooff}, s{s_ooff}, s4")
    P(f"s_and_b32 s5, s{s_b}, 1"); P("s_mul_i32 s5, s5, 3072"); P(f"s_add_u32 s{s_ooff}, s{s_ooff}, s5")
    P(f"s_mov_b32 s{s_kb}, {KV_BASE[0]}")
    for w in (1, 2, 3):
        P(f"s_cmp_eq_u32 s3, {w}"); P(f"s_cselect_b32 s{s_kb}, {KV_BASE[w]}, s{s_kb}")
    P(f"s_mov_b32 s{s_cs}, {f32bits(math.log2(math.e)/math.sqrt(128.0))}")
    P(f"s_lshl_b32 s4, s{s_br}, 4"); P(f"s_lshl_b32 s5, s{s_bg}, 2"); P("s_add_u32 s4, s4, s5")
    P(f"s_lshr_b32 s5, s{s_h}, 3"); P("s_add_u32 s4, s4, s5"); P(f"s_lshl_b32 s{s_sig}, s4, 3")
    P(f"s_mov_b32 s{s_t0}, s{s_kvoff}"); P(f"s_add_u32 s{s_t0+1}, s{s_kvoff}, 4096"); P(f"s_add_u32 s{s_t0+2}, s{s_kvoff}, 8192")
    if o.p2map == 'A':
        P(f"s_and_b32 s4, s{s_hg}, 1"); P("s_lshl_b32 s4, s4, 2"); P(f"s_and_b32 s5, s{s_idx}, 3"); P(f"s_add_u32 s{s_rt}, s4, s5")
        P(f"s_lshr_b32 s4, s{s_hg}, 1"); P("s_lshl_b32 s4, s4, 3"); P(f"s_lshr_b32 s5, s{s_idx}, 2"); P(f"s_add_u32 s{s_ct}, s4, s5")
    else:
        P(f"s_and_b32 s{s_rt}, s{s_idx}, 7")
        if o.cmap == 0:
            P(f"s_lshl_b32 s4, s{s_hg}, 2"); P(f"s_lshr_b32 s5, s{s_idx}, 3"); P(f"s_add_u32 s{s_ct}, s4, s5")
        elif o.cmap == 1:
            P(f"s_lshr_b32 s5, s{s_idx}, 3"); P("s_lshl_b32 s5, s5, 2"); P(f"s_add_u32 s{s_ct}, s{s_hg}, s5")
        else:
            P(f"s_lshr_b32 s5, s{s_idx}, 3"); P(f"s_and_b32 s4, s5, 1"); P(f"s_lshr_b32 s5, s5, 1"); P("s_lshl_b32 s5, s5, 2"); P("s_add_u32 s4, s4, s5")
            P(f"s_and_b32 s5, s{s_hg}, 1"); P("s_lshl_b32 s5, s5, 1"); P("s_add_u32 s4, s4, s5")
            P(f"s_lshr_b32 s5, s{s_hg}, 1"); P("s_lshl_b32 s5, s5, 3"); P(f"s_add_u32 s{s_ct}, s4, s5")
    P.extend(p2_slots789())
    P(f"s_lshl_b32 s4, s{s_br}, 4"); P(f"s_lshr_b32 s5, s{s_rt}, 1"); P("s_lshl_b32 s5, s5, 2"); P("s_add_u32 s4, s4, s5")
    P("s_add_u32 s4, s4, s3"); P(f"s_lshl_b32 s{s_poll}, s4, 3")

def p1_vector_a(P):
    P("v_lshrrev_b32 v1, 3, v0")
    P("v_lshrrev_b32 v2, 4, v0")
    P("v_and_b32 v3, 15, v0")
    P("v_lshrrev_b32 v4, 1, v3"); P("v_and_b32 v5, 1, v0")
    for j in range(4):
        if j in (0, 2):
            P(f"v_or_b32 v6, {(j>>1)<<2}, v2"); P("v_xor_b32 v6, v6, v4"); P("v_lshlrev_b32 v6, 5, v6")
            P("v_lshl_add_u32 v6, v5, 4, v6"); P("v_lshl_add_u32 v6, v2, 13, v6")
        P(f"v_add_u32 v{V_W+j}, {4*j*8192 - j*1024}, v6")
    P("v_and_b32 v4, 7, v0")
    for par in range(2):
        P(f"v_or_b32 v6, {4*par}, v2"); P("v_xor_b32 v6, v6, v4"); P("v_lshlrev_b32 v6, 4, v6")
        P("v_lshl_add_u32 v6, v1, 11, v6")
        for i in range(par, 6, 2):
            imm = (i if i < 4 else i-4)*1024
            P(f"v_add_u32 v{V_X+i}, {8*i*2048-imm}, v6")

def p1_vector_b(P):
    P("v_lshrrev_b32 v4, 2, v3")
    P("v_and_b32 v5, 3, v0")
    P("v_and_b32 v6, 1, v2"); P("v_lshl_or_b32 v6, v6, 2, v4")
    P("v_lshl_add_u32 v7, v2, 3, v4"); P("v_lshlrev_b32 v7, 8, v7"); P("v_lshl_add_u32 v7, v5, 3, v7")
    P(f"v_lshl_add_u32 v{V_TA}, v6, 5, v7")
    for tt in range(1, 8): P(f"v_xor_b32 v{V_TA+tt}, {tt*32}, v{V_TA}")
    P("v_lshrrev_b32 v6, 1, v3"); P("v_xor_b32 v6, v6, v2"); P("v_lshlrev_b32 v6, 4, v6"); P("v_lshl_add_u32 v6, v3, 7, v6")
    P(f"v_add_u32 v{V_XR}, s{s_mx}, v6"); P(f"v_xor_b32 v{V_XR+1}, 64, v{V_XR}")
    P(f"v_lshlrev_b32 v{V_L16}, 4, v0")
    P(f"v_mul_u32_u24 v6, {K_STRIDE}, v2"); P("v_lshl_add_u32 v6, v3, 4, v6"); P(f"v_add_u32 v{V_KW}, s{s_kb}, v6")
    P(f"v_mul_u32_u24 v6, {V_STRIDE}, v2"); P("v_lshl_add_u32 v6, v3, 4, v6"); P(f"v_add_u32 v{V_VW}, s{s_kb}, v6")
    P(f"v_mul_u32_u24 v6, {K_STRIDE}, v3"); P("v_lshl_add_u32 v6, v2, 3, v6"); P(f"v_add_u32 v{V_KR}, s{s_kb}, v6")
    P("v_lshl_add_u32 v6, v2, 2, v4")
    P(f"v_mul_u32_u24 v7, {V_STRIDE}, v6"); P("v_lshl_add_u32 v7, v5, 3, v7"); P(f"v_add_u32 v{V_VR}, s{s_kb}, v7")
    P("v_lshrrev_b32 v7, 1, v6"); P("v_and_b32 v7, 3, v7")
    P("v_lshlrev_b32 v6, 7, v6"); P("v_lshl_add_u32 v6, v5, 3, v6"); P("v_lshl_add_u32 v6, v7, 5, v6")
    P(f"v_mov_b32 v{V2_TA}, v6")
    for tn in range(1, 4): P(f"v_xor_b32 v{V2_TA+tn}, {tn*32}, v{V2_TA}")
    P("v_and_b32 v6, 7, v0"); P("v_lshrrev_b32 v6, 1, v6"); P("v_xor_b32 v6, v6, v2"); P("v_lshlrev_b32 v6, 5, v6")
    P("v_and_b32 v7, 1, v0"); P("v_lshl_add_u32 v6, v7, 4, v6")
    P(f"v_lshl_add_u32 v{V2_WD}, v1, 11, v6")
    for j in range(1, 4): P(f"v_add_u32 v{V2_WD+j}, {j*(16384-1024)}, v{V2_WD}")

def dma_stage(s, o):
    slot = s % 3; L = []; tag = f"dma{s}"
    L.append(mk(f"s_add_u32 m0, s{s_mw}, {LDS_W + slot*16384}"))
    for j in range(4):
        L.append(mk(f"buffer_load_dwordx4 v{V_W+j}, {srd(sWQ)}, s{s_woff} offen offset:{j*1024} {o.nt_w} lds", tag))
    L.append(mk(f"s_add_u32 m0, s{s_mx}, {slot*24576}"))
    for i in range(4):
        L.append(mk(f"buffer_load_dwordx4 v{V_X+i}, {srd(sX)}, s{s_xoff} offen offset:{i*1024} {o.nt_x} lds", tag))
    L.append(mk(f"s_add_u32 m0, s{s_mx}, {slot*24576+4096}"))
    for i in (4, 5):
        L.append(mk(f"buffer_load_dwordx4 v{V_X+i}, {srd(sX)}, s{s_xoff} offen offset:{(i-4)*1024} {o.nt_x} lds", tag))
    if o.perm is not None:
        if s < 15:
            src = s_st if s+1 < 8 else s_pm2
            L.append(mk(f"s_bfe_u32 s4, s{src}, {hex((4 << 16) | (4*((s+1) & 7)))}"))
            L.append(mk(f"s_lshl_b32 s5, s4, 7"))
            L.append(mk(f"s_add_u32 s{s_xoff}, s{s_xb}, s5"))
            L.append(mk(f"s_lshl_b32 s4, s4, 19"))
            L.append(mk(f"s_add_u32 s{s_woff}, s{s_wb}, s4"))
    elif not o.rot:
        L.append(mk(f"s_add_u32 s{s_woff}, s{s_woff}, {64*8192}"))
        L.append(mk(f"s_add_u32 s{s_xoff}, s{s_xoff}, 128"))
    else:
        blk = ((s+1)//o.rb)*o.rb
        L.append(mk(f"s_add_u32 s{s_st}, s{s_st}, 1"))
        L.append(mk(f"s_and_b32 s{s_st}, s{s_st}, {o.rb-1}"))
        L.append(mk(f"s_or_b32 s4, s{s_st}, {blk}"))
        L.append(mk(f"s_lshl_b32 s5, s4, 7"))
        L.append(mk(f"s_add_u32 s{s_xoff}, s{s_xb}, s5"))
        L.append(mk(f"s_lshl_b32 s4, s4, 19"))
        L.append(mk(f"s_add_u32 s{s_woff}, s{s_wb}, s4"))
    return L

def frag_reads(s, ss):
    slot = s % 3; buf = (2*s+ss) & 1; L = []
    for u in range(3):
        L.append(mk(f"ds_read_b128 {ar(fb(buf,u),4)}, v{V_XR+ss} offset:{slot*24576 + u*2048}", f"fr{s}"))
    for t in range(8):
        for j in range(2):
            L.append(mk(f"ds_read_b64_tr_b16 {ar(fa(buf,t)+2*j,2)}, v{V_TA+t} offset:{slot*16384 + ss*8192 + j*1024}", f"fr{s}"))
    return L

MORDER = ['t']
def mfma_block(s, ss):
    buf = (2*s+ss) & 1; L = []
    order = [(t, u) for t in range(8) for u in range(3)] if MORDER[0] == 't' else [(t, u) for u in range(3) for t in range(8)]
    if MORDER[0] == 'z': order = [(t if u % 2 == 0 else 7-t, u) for u in range(3) for t in range(8)]
    if MORDER[0] == 's': order = [(t, u if t % 2 == 0 else 2-u) for t in range(8) for u in range(3)]
    for (t, u) in order:
        if True:
            c = "0" if (s == 0 and ss == 0) else vr(acc(t,u),4)
            L.append(mk(f"v_mfma_f32_16x16x32_bf16 {vr(acc(t,u),4)}, {ar(fa(buf,t),4)}, {ar(fb(buf,u),4)}, {c}"))
    return L

def kv_loads(o):
    L = []
    for i in range(24):
        isv = i >= 12; ii = i % 12
        L.append(mk(f"buffer_load_dwordx4 {ar(A_KV+4*i,4)}, v{V_L16}, {srd(sV if isv else sK)}, s{s_t0 + (ii//4)} offen offset:{(ii%4)*1024} {o.nt_kv}", "kv"))
    return L

def split_dma(L):
    n = 0
    for k, i in enumerate(L):
        if i.kind == 'dma':
            n += 1
            if n == 5: return L[:k+1], L[k+1:]
    return L, []

def anchor(L, gaps):
    T = []; j = 0
    for i in L:
        if i.kind in ('dma', 'vload', 'vstore'):
            T.append((gaps[min(j, len(gaps)-1)], i)); j += 1
        else:
            g = gaps[j]-1 if j < len(gaps) else gaps[-1]
            T.append((max(g, 0), i))
    return T

def fill_gaps(mf, timed, per_gap=2):
    out = []; pend = list(timed)
    for k, m in enumerate(mf):
        out.append(m)
        n = 0; j = 0
        while n < per_gap and j < len(pend):
            if pend[j][0] <= k:
                out.append(pend.pop(j)[1]); n += 1
            else: j += 1
    out.extend(x[1] for x in pend)
    return out

s_ws = 14
def p2_tables(o):
    L = []; A = lambda x: L.append(mk(x))
    A(f"s_lshl_b32 s12, s{s_br}, 3"); A(f"s_add_u32 s12, s12, s{s_rt}"); A(f"s_mul_i32 s12, s12, {o.oblk}")
    A(f"s_mul_i32 s13, s3, {8*24576}"); A(f"s_add_u32 s{s_oo}, s12, s13")
    A(f"s_lshl_b32 s{s_wo2}, s3, 21"); A(f"s_lshl_b32 s12, s{s_ct}, 7"); A(f"s_add_u32 s{s_wo2}, s{s_wo2}, s12")
    if o.p2map == 'A':
        A(f"s_and_b32 s12, s{s_idx}, 3"); A(f"s_lshr_b32 s13, s{s_idx}, 2")
    else:
        A(f"s_and_b32 s12, s{s_idx}, 7"); A(f"s_lshr_b32 s13, s{s_idx}, 3")
    A(f"s_mul_i32 s12, s12, {o.p2rot_r}"); A(f"s_mul_i32 s13, s13, {o.p2rot_c}"); A(f"s_add_u32 s12, s12, s13")
    A(f"s_and_b32 s{s_ws}, s12, {o.R-1}")
    A("s_lshl_b32 s12, s3, 12")
    for k, base in enumerate((122880 + 5*4096, 16384, 73728, 32768, 98304, 0, 49152)):
        A(f"s_add_u32 s{S_SLOT[k]}, s12, {base}")
    return L
def p2_slots789():
    tab = [(90112, 94208, 114688), (118784, 65536, 69632), (122880, 126976, 131072), (135168, 139264, 159744)]
    L = []; A = lambda x: L.append(mk(x))
    for k in range(3): A(f"s_mov_b32 s{S_SLOT[7+k]}, {tab[0][k]}")
    for w in (1, 2, 3):
        A(f"s_cmp_eq_u32 s3, {w}")
        for k in range(3): A(f"s_cselect_b32 s{S_SLOT[7+k]}, {tab[w][k]}, s{S_SLOT[7+k]}")
    return L
S_WT = 20
def wtable_words(o):
    out = []
    for seq in o.wperm:
        w = [0]*8
        for l, k in enumerate(seq): w[l//6] |= k << (5*(l % 6))
        out.append(w)
    return out
def load_wtable(P, o):
    if o.wperm is None: return
    n = len(o.wperm)
    if o.w2d:
        if o.p2map == 'A': P(f"s_and_b32 s4, s{s_idx}, 3"); P(f"s_lshr_b32 s5, s{s_idx}, 2")
        else: P(f"s_and_b32 s4, s{s_idx}, 7"); P(f"s_lshr_b32 s5, s{s_idx}, 3")
        if o.w2d == 9: P(f"s_and_b32 s4, s5, {n-1}")
        else: P(f"s_mul_i32 s5, s5, {o.w2d}"); P("s_add_u32 s4, s4, s5"); P(f"s_and_b32 s4, s4, {n-1}")
    else: P(f"s_and_b32 s4, s{s_idx}, {n-1}")
    P("s_lshl_b32 s4, s4, 5")
    P("s_getpc_b64 s[6:7]")
    P("L_pc:")
    P("s_add_u32 s6, s6, L_wtab-L_pc"); P("s_addc_u32 s7, s7, 0")
    P("s_add_u32 s6, s6, s4"); P("s_addc_u32 s7, s7, 0")
    P("s_load_dwordx4 s[20:23], s[6:7], 0"); P("s_load_dwordx2 s[24:25], s[6:7], 16")
def actual_step(l, o, dst):
    if o.wperm is not None:
        return [mk(f"s_bfe_u32 {dst}, s{S_WT + l//6}, {hex((5 << 16) | (5*(l % 6)))}")]
    R = o.R
    L = [mk(f"s_add_u32 {dst}, s{s_ws}, {l & (R-1)}"), mk(f"s_and_b32 {dst}, {dst}, {R-1}")]
    blk = (l // R)*R
    if blk: L.append(mk(f"s_or_b32 {dst}, {dst}, {blk}"))
    return L

def kv_stage(c):
    if c < 3:
        kt = c
        w = [mk(f"ds_write_b128 v{V_KW}, {ar(A_KV+16*c+4*i,4)} offset:{i*4*K_STRIDE}") for i in range(4)]
        r = [mk(f"ds_read_b64 {ar(kf(kt,p)+2*j,2)}, v{V_KR} offset:{64*p + 32*j}") for p in range(4) for j in range(2)]
    else:
        kt = c - 3
        w = [mk(f"ds_write_b128 v{V_VW}, {ar(A_KV+16*c+4*i,4)} offset:{i*4*V_STRIDE}") for i in range(4)]
        r = [mk(f"ds_read_b64_tr_b16 {ar(vf(t)+2*kt,2)}, v{V_VR} offset:{32*t}") for t in range(8)]
    return w, r

def p1_main(P, o):
    kv = kv_loads(o)
    kvq = {}
    if o.kvmode == 'spread': kvq = {c: 2*c+1 for c in range(6)}
    else:
        for q, (a0, a1) in o.kvmode.items():
            for c in range(a0//4, (a1+3)//4): kvq[c] = q
    dsx = {}
    last = -1
    for c in range(6 if not o.vblocks else 3):
        w, r = kv_stage(c)
        nb = max(2*(kvq[c]+2)+1, last+2)
        dsx.setdefault(nb, []).extend(w); dsx.setdefault(nb+1, []).extend(r); last = nb
    assert last+1 <= 31, last
    tb = p2_tables(o)
    sal = {24: tb[:len(tb)//2], 25: tb[len(tb)//2:]}
    early = {27: [0], 28: [1], 29: [2], 30: [3], 31: [4]} if o.n_early == 5 else ({27: [0], 28: [1, 2]} if o.n_early == 3 else {})
    if o.n_early == 5: early = {27: [0, 1], 28: [2], 29: [3], 30: [4]}
    plan = {}
    delayed = getattr(o, 'delayed', ())
    for st in range(2 if o.pro == 1 else 3, 16):
        h1, h2 = split_dma(dma_stage(st, o))
        if st == 2: b1, b2 = (0, 0) if st not in delayed else (0, 1)
        else: b1, b2 = (2*st-5, 2*st-4) if st not in delayed else (2*st-4, 2*st-3)
        assert b2 <= 2*st-2
        plan.setdefault(b1, []).append((st, 0, h1)); plan.setdefault(b2, []).append((st, 1, h2))
    P.wait(vm="dma0"); P("s_barrier")
    stamp(P, o, 1)
    P.extend(frag_reads(0, 0))
    for s in range(16):
        for ss in range(2):
            n = 2*s + ss
            vm = []
            for (st, hf, L) in sorted(plan.get(n, []), key=lambda x: (x[0], x[1])): vm += L
            if ss == 0:
                P.wait(lgkm=0)
                f = frag_reads(s, 1)
                if o.kvmode == 'spread':
                    if s < 12: vm += kv[2*s:2*s+2]
                elif s in o.kvmode: a0, a1 = o.kvmode[s]; vm += kv[a0:a1]
            else:
                if s + 1 <= 15:
                    P.wait(vm=f"dma{s+1}", lgkm=0); P("s_barrier")
                    if o.stage_stamps and (s+1) % 2 == 0: stamp(P, o, (s+1)//2 + 1, True)
                else:
                    P.wait(lgkm=0)
                f = frag_reads(s+1, 0) if s+1 <= 15 else []
            if o.vblocks and n in o.vblocks: a0, a1 = o.vblocks[n]; vm = vm + kv[a0:a1]
            for l in early.get(n, []): vm = vm + wo_dma(l, o)
            nv = sum(1 for i in vm if i.kind in ('dma', 'vload'))
            gaps = [2 + (k*21)//max(nv,1) for k in range(nv)] if nv else [0]
            T = anchor(vm, gaps) + [((k*2)//3, i) for k, i in enumerate(f)] + [(11+k//2, i) for k, i in enumerate(dsx.get(n, []))]
            T += [(12 + k//2, i) for k, i in enumerate(sal.get(n, []))]
            if n == 31 and o.merge31:
                assert not T
                o.carry = mfma_block(s, ss)
            else:
                P.extend(fill_gaps(mfma_block(s, ss), T))
    if not o.merge31: P.wait(lgkm=0)
    if o.nob16:
        assert o.n_attn <= o.n_early and o.n_pre <= o.n_early and o.tr_attn == 0
    else:
        assert not o.merge31
        P("s_barrier")
    stamp(P, o, 9 if o.stage_stamps else 2, True)

def wo_dma(l, o):
    L = [mk(f"s_mov_b32 m0, s{S_SLOT[l % NSLOT]}")]
    L += actual_step(l, o, f"s{s_wcur}")
    L += [mk(f"s_lshl_b32 s{s_wcur}, s{s_wcur}, 16"), mk(f"s_add_u32 s{s_wcur}, s{s_wcur}, s{s_wo2}")]
    for j in range(4):
        L.append(mk(f"buffer_load_dwordx4 v{V2_WD+j}, {srd(sWO)}, s{s_wcur} offen offset:{j*1024} {o.nt_wo} lds", f"wo{l}"))
    return L
V2_TT = 4
def wo_tr(l):
    L = []
    for tn in range(4):
        L.append(mk(f"v_add_u32 v{V2_TT+tn}, s{S_SLOT[l % NSLOT]}, v{V2_TA+tn}"))
    for tn in range(4):
        for j in range(2):
            L.append(mk(f"ds_read_b64_tr_b16 {rq(woq(l, tn), 2*j, 2)}, v{V2_TT+tn} offset:{j*2048}", f"tr{l}"))
    return L

def softmax_chain(u):
    L = []
    S = [sa(kt, u) + r for kt in range(3) for r in range(4)]
    m = V_M + 4*u; t = m + 1; t2 = m + 2; t3 = m + 3
    A = lambda x: L.append(mk(x))
    A(f"v_max3_f32 v{m}, v{S[0]}, v{S[1]}, v{S[2]}")
    A(f"v_max3_f32 v{t}, v{S[3]}, v{S[4]}, v{S[5]}")
    A(f"v_max3_f32 v{t2}, v{S[6]}, v{S[7]}, v{S[8]}")
    A(f"v_max3_f32 v{t3}, v{S[9]}, v{S[10]}, v{S[11]}")
    A(f"v_max3_f32 v{m}, v{m}, v{t}, v{t2}")
    A(f"v_max_f32 v{m}, v{m}, v{t3}")
    for sw in ("v_permlane16_swap_b32", "v_permlane32_swap_b32"):
        A(f"v_mov_b32 v{t}, v{m}")
        A(f"{sw} v{m}, v{t}")
        A(f"v_max_f32 v{m}, v{m}, v{t}")
    A(f"v_mul_f32 v{m}, s{s_cs}, v{m}")
    for x in S: A(f"v_fma_f32 v{x}, v{x}, s{s_cs}, -v{m}")
    for x in S: A(f"v_exp_f32 v{x}, v{x}")
    A(f"v_add_f32 v{t}, v{S[0]}, v{S[1]}")
    A(f"v_add_f32 v{t2}, v{S[2]}, v{S[3]}")
    A(f"v_add_f32 v{t3}, v{S[4]}, v{S[5]}")
    A(f"v_add_f32 v{m}, v{S[6]}, v{S[7]}")
    A(f"v_add_f32 v{t}, v{t}, v{S[8]}")
    A(f"v_add_f32 v{t2}, v{t2}, v{S[9]}")
    A(f"v_add_f32 v{t3}, v{t3}, v{S[10]}")
    A(f"v_add_f32 v{m}, v{m}, v{S[11]}")
    A(f"v_add_f32 v{t}, v{t}, v{t2}")
    A(f"v_add_f32 v{m}, v{m}, v{t3}")
    A(f"v_add_f32 v{m}, v{m}, v{t}")
    for sw in ("v_permlane16_swap_b32", "v_permlane32_swap_b32"):
        A(f"v_mov_b32 v{t}, v{m}")
        A(f"{sw} v{m}, v{t}")
        A(f"v_add_f32 v{m}, v{m}, v{t}")
    A(f"v_rcp_f32 v{m}, v{m}")
    for x in S: A(f"v_mul_f32 v{x}, v{x}, v{m}")
    for k in range(6):
        A(f"v_cvt_pk_bf16_f32 v{pb(u)+k}, v{S[2*k]}, v{S[2*k+1]}")
    return L

def attention(P, o):
    L = list(getattr(o, 'carry', [])) if o.merge31 else []
    A = lambda x, tag=None: L.append(mk(x, tag))
    for p in range(4): A(f"s_add_u32 s{s_t0+p}, s{s_ooff}, {p*6144}")
    for u in range(3):
        for p in range(4):
            for hf in range(2):
                a0 = acc(2*p+hf, u)
                A(f"v_cvt_pk_bf16_f32 v{qb(u,p)+2*hf}, v{a0}, v{a0+1}")
                A(f"v_cvt_pk_bf16_f32 v{qb(u,p)+2*hf+1}, v{a0+2}, v{a0+3}")
    for u in range(3):
        for p in range(4):
            for kt in range(3):
                c = "0" if p == 0 else vr(sa(kt,u),4)
                A(f"v_mfma_f32_16x16x32_bf16 {vr(sa(kt,u),4)}, {ar(kf(kt,p),4)}, {vr(qb(u,p),4)}, {c}")
    for u in range(3): L.extend(softmax_chain(u))
    rel = {}; edges = []
    if o.vblocks:
        assert o.n_attn <= 7 and o.n_pre <= 7 and o.tr_attn == 0
        prev = None
        for c in (3, 4, 5):
            w, r = kv_stage(c)
            for i in w:
                rel[len(L)] = o.vrel + (c-3)*o.vstep; L.append(i)
                if prev:
                    for j in prev: edges.append((j, i, 0))
            for i in r:
                L.append(i)
                for j in w: edges.append((j, i, 20))
            prev = r
    for u in range(3):
        for t in range(8):
            A(f"v_mfma_f32_16x16x32_bf16 {vr(acc(t,u),4)}, {ar(vf(t),4)}, {vr(pb(u),4)}, 0")
        for t in range(8):
            A(f"v_mfma_f32_16x16x16_bf16 {vr(acc(t,u),4)}, {ar(vf(t)+4,2)}, {vr(pb(u)+4,2)}, {vr(acc(t,u),4)}")
    for u in range(3):
        for p in range(4):
            for hf in range(2):
                a0 = acc(2*p+hf, u)
                A(f"v_cvt_pk_bf16_f32 v{qb(u,p)+2*hf}, v{a0}, v{a0+1}")
                A(f"v_cvt_pk_bf16_f32 v{qb(u,p)+2*hf+1}, v{a0+2}, v{a0+3}")
            A(f"buffer_store_dwordx4 {vr(qb(u,p),4)}, v{V_L16}, {srd(sWS)}, s{s_t0+p} offen offset:{u*1024} {o.o_sc}", "ost")
    items = []
    ne = o.n_early
    groups = [('d', l) for l in range(ne, o.n_attn)]
    seq = []
    t_list = list(range(o.tr_attn))
    while groups or t_list:
        if groups: seq.append(groups.pop(0))
        if t_list: seq.append(('t', t_list.pop(0)))
    nslots = len(seq); prev_tr = None
    for k, (kind, l) in enumerate(seq):
        t0 = (k*o.attn_span)//max(nslots, 1)
        if kind == 'd':
            D = wo_dma(l, o); nd = 0
            for i in D:
                rel[len(L)] = t0 + (nd*o.attn_span)//(4*max(nslots,1)) ; L.append(i)
                if i.kind == 'dma': nd += 1
        else:
            wv = mkwait(vm=f"wo{l}", soft=True); rel[len(L)] = t0; L.append(wv)
            T = wo_tr(l)
            for i in T:
                rel[len(L)] = t0; L.append(i)
                if i.kind == 'dsread': edges.append((wv, i, 0))
            if prev_tr is not None:
                for i in T[:4]:
                    for j in prev_tr: edges.append((j, i, 0))
            prev_tr = [i for i in T if i.kind == 'dsread']
            wl = mkwait(lgkm=f"tr{l}", soft=True); rel[len(L)] = t0 + 160; L.append(wl)
            for i in prev_tr: edges.append((i, wl, 100))
            D = wo_dma(l+10, o)
            for i in D:
                rel[len(L)] = t0 + 160; L.append(i)
                if i.kind == 'dma': edges.append((wl, i, 0))
    def sink(i):
        if i.kind == 'vstore' and o.stag:
            m = re.search(r'offset:(\d+)', i.text); u = int(m.group(1))//1024
            return (2-u)*o.stag
        return 0
    order = list_schedule(L, release=rel, verbose=o.verbose, edges=edges, sink_lat=sink, mfma_first=o.mfma_first)
    P.extend(order)
    stamp(P, o, 3)

def gap(P, o):
    issued = set(range(max(o.n_early, o.n_attn))) | {l+10 for l in range(o.tr_attn)}
    def dma(l):
        if l not in issued and l < o.nreg + 10:
            P.extend(wo_dma(l, o)); issued.add(l)
    for l in range(o.n_pre): dma(l)
    assert o.tr_pre <= max(o.n_early, o.n_attn) and not (o.tr_pre and o.tr_attn)
    for l in range(o.tr_pre):
        P.wait(vm=f"wo{l}")
        P.extend(wo_tr(l))
    P.wait(vm=0 if o.drain else "ost")
    stamp(P, o, 4)
    if o.tr_pre: P.wait(lgkm=0)
    P("s_barrier").note = 'publish'
    P("s_cmp_lg_u32 s3, 0")
    P("s_cbranch_scc1 L_nosig")
    P("v_mov_b32 v1, 1"); P("v_mov_b32 v2, 0")
    P("s_mov_b64 exec, 1")
    P(f"buffer_atomic_add v1, v2, {srd(sDBG)}, s{s_sig} offen sc1").note = 'slowpath'
    P("s_mov_b64 exec, -1")
    P("L_nosig:")
    P("v_mov_b32 v2, 0")
    for l in range(10): dma(l)
    for l in range(o.tr_pre):
        P.wait(lgkm=f"tr{l}"); dma(l+10)
    def poll_load(): P(f"buffer_load_dword v1, v2, {srd(sDBG)}, s{s_poll} offen sc1", "poll")
    for l in range(max(o.tr_attn, o.tr_pre), o.nreg):
        if l == o.poll_at: poll_load()
        P.wait(vm=f"wo{l}")
        P.extend(wo_tr(l))
        if l >= 1:
            P.wait(lgkm=f"tr{l-1}")
            dma(l-1+10)
    P.wait(lgkm=f"tr{o.nreg-1}"); dma(o.nreg+9)
    stamp(P, o, 5)
    if o.poll_at >= o.nreg: poll_load()
    P.wait(vm="poll")
    P("v_readfirstlane_b32 s4, v1")
    P("s_cmp_ge_u32 s4, 8")
    P("s_cbranch_scc1 L_polldone")
    P("s_mov_b32 s5, 0")
    P("L_poll:")
    P(f"buffer_load_dword v1, v2, {srd(sDBG)}, s{s_poll} offen sc1").note = 'slowpath'
    i = Inst("s_waitcnt vmcnt(0)"); i.note = 'slowpath'; P.add(i)
    P("v_readfirstlane_b32 s4, v1")
    P("s_add_u32 s5, s5, 1")
    P("s_cmp_gt_u32 s5, 0x40000")
    P("s_cbranch_scc1 L_polldone")
    P("s_cmp_lt_u32 s4, 8")
    P("s_cbranch_scc1 L_poll")
    P("L_polldone:")
    stamp(P, o, 6)

def o_load(i, f, o):
    r = V2_O + (i % o.DO)*24 + f*4
    sreg = s_t0 + (i & 1)*2 + (1 if f >= 4 else 0)
    return mk(f"buffer_load_dwordx4 {vr(r,4)}, v{V_L16}, {srd(sWS)}, s{sreg} offen offset:{(f if f < 4 else f-4)*1024} {o.o_ld}", f"o{i}")
def o_soff(i, o):
    b = s_t0 + (i & 1)*2
    L = actual_step(i, o, f"s{b}")
    L += [mk(f"s_mul_i32 s{b}, s{b}, 6144"), mk(f"s_add_u32 s{b}, s{b}, s{s_oo}"), mk(f"s_add_u32 s{b+1}, s{b}, 4096")]
    return L

def p2_main(P, o):
    DO = o.DO
    for i in range(DO):
        P.extend(o_soff(i, o))
        for f in range(6): P.add(o_load(i, f, o))
    P("v_lshrrev_b32 v1, 3, v0"); P("v_lshrrev_b32 v2, 4, v0"); P("v_and_b32 v3, 15, v0"); P("v_and_b32 v4, 7, v0")
    P(f"s_mul_i32 s4, s3, {RED_WAVE}")
    P(f"v_mul_u32_u24 v5, {RED_STRIDE}, v3"); P("v_lshl_add_u32 v5, v2, 4, v5"); P(f"v_add_u32 v{V2_RW}, s4, v5")
    P(f"s_mul_i32 s4, s3, {24*RED_STRIDE}")
    P(f"v_mul_u32_u24 v5, {RED_STRIDE}, v1"); P("v_lshl_add_u32 v5, v4, 5, v5"); P(f"v_add_u32 v{V2_RR}, s4, v5")
    P(f"v_add_u32 v{V2_RR+1}, {2*RED_WAVE}, v{V2_RR}")
    P("v_lshlrev_b32 v5, 12, v1"); P(f"v_lshl_add_u32 v{V2_OUT}, v4, 4, v5")
    P(f"s_mul_i32 s{s_outoff}, s{s_rt}, {96*4096}"); P(f"s_lshl_b32 s4, s{s_br}, 11"); P(f"s_add_u32 s{s_outoff}, s{s_outoff}, s4")
    P(f"s_lshl_b32 s4, s{s_ct}, 7"); P(f"s_add_u32 s{s_outoff}, s{s_outoff}, s4")
    P(f"s_mul_i32 s4, s3, {24*4096}"); P(f"s_add_u32 s{s_outoff}, s{s_outoff}, s4")
    for i in range(32):
        if i >= o.nreg: P.wait(lgkm=0)
        if i == 31 and o.tail2: P("s_barrier")
        mf = []
        for f in range(6):
            for tn in range(4):
                c = "0" if i == 0 else vr(acc2(tn,f),4)
                mf.append(mk(f"v_mfma_f32_16x16x32_bf16 {vr(acc2(tn,f),4)}, {rq(woq(i, tn), 0, 4)}, {vr(V2_O+(i%DO)*24+f*4,4)}, {c}"))
        if o.p2exp == 'nomfma': mf = [mk(f"v_mov_b32 v{8+k}, v{V2_O+(i%DO)*24+(k//4)*4}") for k in range(24)]
        T = []
        if i+DO < 32: T += [(0, x) for x in o_soff(i+DO, o)]
        if o.nreg <= i+1 < 32:
            T.append((1, mkwait(vm=f"wo{i+1}")))
            T += [(1, x) for x in wo_tr(i+1)]
        if i+DO < 32 and o.p2exp != 'noload': T += [(4*f+3, o_load(i+DO, f, o)) for f in range(6)]
        if o.nreg <= i < 22:
            T += [(5+2*k, x) for k, x in enumerate(wo_dma(i+10, o))]
        if i == 31 and o.tail2:
            T += [(min(4*f+tn+5, 23), mk(f"ds_write_b128 v{V2_RW}, {vr(acc2(tn,f),4)} offset:{f*16*RED_STRIDE + tn*64}")) for f in range(6) for tn in range(4) if 4*f+tn+5 <= 23]
        P.extend(fill_gaps(mf, T))
    stamp(P, o, 7)

def p2_epilogue(P, o):
    if not o.tail2: P("s_barrier")
    for f in range(6):
        for tn in range(4):
            if o.tail2 and 4*f+tn+5 <= 23: continue
            P(f"ds_write_b128 v{V2_RW}, {vr(acc2(tn,f),4)} offset:{f*16*RED_STRIDE + tn*64}")
    P.wait(lgkm=0); P("s_barrier")
    for i in range(3):
        for wv in range(4):
            for h in range(2):
                P(f"ds_read_b128 {vr(V2_R + (i*4+wv)*8 + 4*h, 4)}, v{V2_RR + (wv>>1)} offset:{(wv&1)*RED_WAVE + i*8*RED_STRIDE + 16*h}")
    for i in range(3):
        b = V2_R + i*32
        for e in range(8):
            P(f"v_add_f32 v{b+e}, v{b+e}, v{b+8+e}")
            P(f"v_add_f32 v{b+16+e}, v{b+16+e}, v{b+24+e}")
        for e in range(8): P(f"v_add_f32 v{b+e}, v{b+e}, v{b+16+e}")
        for e in range(4): P(f"v_cvt_pk_bf16_f32 v{b+e}, v{b+2*e}, v{b+2*e+1}")
        P(f"s_add_u32 s4, s{s_outoff}, {i*8*4096}")
        P(f"buffer_store_dwordx4 {vr(b,4)}, v{V2_OUT}, {srd(sOUT)}, s4 offen {o.out_sc}")
    stamp(P, o, 8)

def write_stamps(P, o, n):
    if not o.stamps: return
    P.wait(lgkm=0)
    P("v_mov_b32 v1, 0")
    for j in range(2*n): P(f"v_writelane_b32 v1, s{S_STAMP+j}, {j}")
    P("s_lshl_b32 s4, s2, 2"); P("s_add_u32 s4, s4, s3"); P("s_lshl_b32 s4, s4, 7"); P(f"s_add_u32 s4, s4, {STAMP_OFF}")
    P("v_lshlrev_b32 v2, 2, v0")
    P(f"s_mov_b64 exec, {hex((1<<(2*n))-1)}")
    P(f"buffer_store_dword v1, v2, {srd(sWS)}, s4 offen")
    P("s_mov_b64 exec, -1")

def kernel_text(name, insts):
    return f""".text
.globl {name}
.p2align 8
.type {name},@function
{name}:
{text_of(insts)}
.section .rodata,"a"
.p2align 6
.amdhsa_kernel {name}
  .amdhsa_next_free_vgpr 512
  .amdhsa_next_free_sgpr 102
  .amdhsa_accum_offset 256
  .amdhsa_group_segment_fixed_size 0
  .amdhsa_kernarg_size 104
  .amdhsa_user_sgpr_count 2
  .amdhsa_user_sgpr_kernarg_segment_ptr 1
  .amdhsa_system_sgpr_workgroup_id_x 1
.end_amdhsa_kernel
.text
"""

def gen_kernel(name, o):
    NREG[0] = o.nreg; ARCH0[0] = V2_O + 24*o.DO; MORDER[0] = o.morder
    assert ARCH0[0] + 16*(o.nreg-16) <= 256
    P = Prog()
    P("L_start:")
    prologue(P, o)
    p1_scalar(P, o)
    p1_vector_a(P)
    build_srds(P)
    if o.pro_stamps: stamp(P, o, 3, True)
    for s in range(3 if o.pro == 0 else 1):
        P.extend(dma_stage(s, o))
        if o.pro_stamps: stamp(P, o, 4+s, True)
    if o.ctouch == 1: code_touch(P, o)
    build_srds2(P)
    p1_scalar2(P, o)
    load_wtable(P, o)
    p1_vector_b(P)
    if o.pro >= 1: P.extend(dma_stage(1, o))
    if o.pro == 2: P.extend(dma_stage(2, o))
    if o.touch:
        P("v_mov_b32 v7, 0")
        P("s_lshl_b32 s4, s3, 21")
        P(f"buffer_load_dword v254, v7, {srd(sWO)}, s4 offen", "touch")
        P(f"s_mul_i32 s4, s{s_rt}, {96*4096}")
        P(f"buffer_load_dword v254, v7, {srd(sOUT)}, s4 offen", "touch")
        if o.touch >= 2:
            P(f"buffer_load_dword v254, v7, {srd(sK)}, s{s_kvoff} offen", "touch")
            P(f"buffer_load_dword v254, v7, {srd(sV)}, s{s_kvoff} offen", "touch")
        if o.touch >= 3:
            assert o.oblk == 1 << 20
            P(f"s_and_b32 s4, s{s_ooff}, 0xfff00000"); P("s_add_u32 s4, s4, 0xc0000")
            P(f"buffer_load_dword v254, v7, {srd(sWS)}, s4 offen", "touch")
            P(f"s_lshl_b32 s4, s{s_br}, 3"); P(f"s_add_u32 s4, s4, s{s_rt}"); P("s_lshl_b32 s4, s4, 20"); P("s_add_u32 s4, s4, 0xc0000")
            P(f"buffer_load_dword v254, v7, {srd(sWS)}, s4 offen", "touch")
    if o.pro_stamps: stamp(P, o, 7, True)
    if o.upto >= 1:
        if isinstance(o.kvmode, list):
            P(f"s_mul_i32 s4, s{s_bg}, {o.phi[0]}"); P(f"s_lshr_b32 s5, s{s_idx}, 2"); P(f"s_mul_i32 s5, s5, {o.phi[1]}")
            P("s_add_u32 s4, s4, s5"); P("s_and_b32 s4, s4, 3")
            modes = o.kvmode
            for ph in (1, 2, 3):
                P(f"s_cmp_eq_u32 s4, {ph}"); P(f"s_cbranch_scc1 L_var{ph}")
            for ph in range(4):
                if ph: P(f"L_var{ph}:")
                o.kvmode = modes[ph]
                o.delayed = o.delay_sets[ph] if o.delay_sets else ()
                Q = Prog(); p1_main(Q, o)
                sub = resolve_waits(Q.insts + [mkwait(vm=None, lgkm=None)])
                P.add(Inst(".variant_begin")); P.extend(Q.insts); P.add(Inst(".variant_end"))
                if ph < 3: P("s_branch L_varjoin")
            P("L_varjoin:")
            o.kvmode = modes
        else:
            p1_main(P, o)
    if o.upto >= 2: attention(P, o)
    if o.upto >= 3: gap(P, o)
    if o.upto >= 4:
        p2_main(P, o)
        p2_epilogue(P, o)
    if o.endwait or o.stamps: P.wait(vm=0)
    stamp(P, o, 9)
    write_stamps(P, o, 10)
    if o.endwait or o.stamps: P.wait(vm=0)
    P("L_exit:")
    P("s_endpgm")
    if o.wperm is not None:
        P(".p2align 6"); P("L_wtab:")
        for w in wtable_words(o): P(".long " + ", ".join(hex(x) for x in w))
    insts, nops = finalize(P)
    for ta in (False, True):
        for ts in (False, True):
            bad = verify_counters(insts, ta, ts)
            assert not bad, (name, ta, ts, bad[:5])
    txt = kernel_text(name, insts)
    txt = txt.replace(".variant_begin", "").replace(".variant_end", "")
    for lab in ("L_exit", "L_nosig", "L_polldone", "L_poll", "L_var1", "L_var2", "L_var3", "L_varjoin", "L_pc", "L_wtab", "L_pc2", "L_start"):
        txt = re.sub(r'\b' + lab + r'\b', lab + "_" + name[-24:], txt)
    return txt, len(insts), nops

def pioneer_perm(L, period=4, n=16):
    out = []
    for phi in range(period):
        left = list(range(n)); seq = []
        for t in range(n):
            k = t + L if (t % period == phi and t + L in left) else left[0]
            left.remove(k); seq.append(k)
        out.append(seq)
    return out

HEADER = """; concat_heads( MHA block , GQA block ):  out[:, :, 0:1024] = branch A, out[:, :, 1024:2048] = branch B,
"""
def final_file(o):
    t, n, _ = gen_kernel(KNAME, o)
    return HEADER + "; @launch grid=(256,1,1) block=(256,1,1) lds=163840\n" + '.amdgcn_target "amdgcn-amd-amdhsa--gfx950"\n' + t

def build(V, fn="fx"):
    from hipmini import metadata, assemble
    s = '.amdgcn_target "amdgcn-amd-amdhsa--gfx950"\n'; ks = []
    for n, o in V.items():
        t, ni, nops = gen_kernel(n, o); s += t; ks.append((n, 102, 512, 256))
    s += metadata(ks, 13)
    open(f"work/{fn}.s", "w").write(s); assemble(f"work/{fn}.s", f"work/{fn}.co"); print(" ".join(V), ni, nops)

if __name__ == "__main__":
    V = {}
    def k6(*st): return {q:(4*i,4*i+4) for i, q in enumerate(st)}
    base = dict(stamps=True, nt_kv="nt", tail2=True, stag=300, out_sc="sc1", n_early=5, n_attn=5, n_pre=5,
            perm=pioneer_perm(3), hmap=1, mfma_first=True, cmap=1, pro=1, kvmode=k6(2,4,6,8,10,12), p2map='B', R=8, p2rot_c=0, p2rot_r=1)
    for clk, nm in (("s_memrealtime", "t"), ("s_memtime", "c")):
        V[f"{nm}_full"] = Opt(**base, nreg=20, DO=2, poll_at=19, clk=clk)
        V[f"{nm}_nomfma"] = Opt(**base, nreg=20, DO=2, poll_at=19, clk=clk, p2exp='nomfma')
        V[f"{nm}_noload"] = Opt(**base, nreg=20, DO=2, poll_at=19, clk=clk, p2exp='noload')
        V[f"{nm}_D3"] = Opt(**base, nreg=18, DO=3, poll_at=17, clk=clk)
    build(V)
```

```python
import sys, math, re, struct
from asmgen import *

KNAME = "concat_heads__mha_block_cached__gqa_block_cached__near_ridge_kernel"
STAMP_OFF = 16 << 20

sX, sWQ, sK, sV, sWS, sWO, sOUT, sDBG = 32, 36, 40, 44, 48, 52, 56, 60
S_TO, S_TW = 32, 40
s_br, s_h, s_b, s_bg, s_hg, s_idx = 26, 27, 28, 29, 30, 31
s_xoff, s_woff, s_kvoff, s_ooff, s_mx, s_mw = 64, 65, 66, 67, 68, 69
s_t0 = 70
s_kb = 74; s_m2 = 75; s_cs = 76
s_st, s_xb, s_wb = 77, 78, 79
s_pm2 = 75
s_wcur = 15; s_outoff = 78; s_oo = 8; s_wo2 = 9
S_SLOT = [40, 41, 42, 43, 66, 74, 17, 10, 11, 16]
s_rt, s_ct = 18, 19
s_sig, s_poll = 100, 101
S_STAMP = 80

def srd(n): return f"s[{n}:{n+3}]"
def vr(n, c=1): return f"v{n}" if c == 1 else f"v[{n}:{n+c-1}]"
def ar(n, c=1): return f"a{n}" if c == 1 else f"a[{n}:{n+c-1}]"
def f32bits(x): return hex(struct.unpack('<I', struct.pack('<f', x))[0])

class Opt:
    def __init__(self, **kw):
        self.nt_x = ""; self.nt_w = ""; self.nt_kv = ""; self.nt_wo = ""; self.o_sc = "sc1"; self.o_ld = "sc1"; self.out_sc = ""
        self.stamps = False; self.clk = 's_memrealtime'; self.stage_stamps = False
        self.rot = False; self.rb = 8; self.rot_bg = 2; self.rot_h = 1; self.kvmode = 'spread'
        self.p2map = 'A'; self.p2rot_c = 1; self.p2rot_r = 2
        self.n_attn = 10
        self.attn_span = 2600
        self.DO = 3; self.n_pre = 10; self.upto = 9; self.tr_pre = 0; self.merge31 = False; self.nob16 = False; self.morder = 't'; self.ctn = 3; self.ctouch = False; self.p2exp = ''; self.vrel = 100; self.vstep = 150; self.vblocks = None; self.delay_sets = None; self.oblk = 32*24576; self.pro = 0; self.pro_stamps = False; self.w2d = 0; self.xor = 0; self.drain = True; self.perm_ws = False; self.hmap = 0; self.cmap = 0; self.touch = False; self.pk = False; self.mfma_first = False; self.nreg = 16; self.tail2 = False; self.stag = 0; self.endwait = True; self.wperm = None; self.perm = None; self.phi = (1, 3); self.R = 8; self.n_mid = 0; self.n_early = 5; self.tr_attn = 0; self.poll_at = 16
        self.verbose = False
        self.__dict__.update(kw)

def stamp(P, o, i, stage=False):
    if o.stamps == 'dual':
        m = {0: 0, 2: 2, 6: 4, 7: 6}
        if i in m:
            P(f"s_memrealtime s[{S_STAMP+2*m[i]}:{S_STAMP+2*m[i]+1}]"); P(f"s_memtime s[{S_STAMP+2*m[i]+2}:{S_STAMP+2*m[i]+3}]")
        if i == 9: P(f"s_memrealtime s[{S_STAMP+16}:{S_STAMP+17}]"); P(f"s_memtime s[{S_STAMP+18}:{S_STAMP+19}]")
        return
    if o.stamps and (stage or not o.stage_stamps or i <= 1): P(f"{o.clk} s[{S_STAMP+2*i}:{S_STAMP+2*i+1}]")

ACC = 8
def acc(t, u): return ACC + (t*3 + u)*4
V_X, V_W, V_TA, V_XR, V_L16 = 104, 110, 114, 122, 124
V_KW, V_VW, V_KR, V_VR = 125, 126, 127, 128
V2_WD, V2_TA = 130, 134
QB = 140
def qb(u, p): return QB + (u*4 + p)*4
SA = 188
def sa(kt, u): return SA + (u*3 + kt)*4
PB = 224
def pb(u): return PB + u*6
V_M = 242
A_KV = 0
def kf(kt, p): return A_KV + (kt*4 + p)*4
def vf(t): return 184 + t*6
A_FA, A_FB = 96, 160
def fa(buf, t): return A_FA + buf*32 + t*4
def fb(buf, u): return A_FB + buf*12 + u*4
LDS_W, LDS_X = 0, 49152
K_STRIDE, V_STRIDE = 272, 288
KV_BASE = [122880 + w*4608 for w in range(4)]
def acc2(tn, f): return 8 + (f*4 + tn)*4
V2_O = 140
V2_RW, V2_RR, V2_OUT = 104, 105, 107
V2_R = 132
_Q1 = list(range(48, 184, 4)) + list(range(232, 256, 4))
_Q2 = list(range(0, 48, 4)) + list(range(184, 232, 4))
NREG = [16]; ARCH0 = [188]
def woq(l, tn):
    if l < 10: return ('a', _Q1[4*l + tn])
    if l < 16: return ('a', _Q2[4*(l-10) + tn])
    if l < NREG[0]: return ('v', ARCH0[0] + 16*(l-16) + 4*tn)
    return ('a', _Q1[4*(l & 1) + tn])
def rq(q, off, n): return f"{q[0]}[{q[1]+off}:{q[1]+off+n-1}]"
NSLOT = 10
RED_STRIDE = 272; RED_WAVE = 96*272

def prologue(P, o):
    P("s_cmp_ge_u32 s2, 0x100")
    P("s_cbranch_scc1 L_exit")
    if o.ctouch == 3:
        P("v_lshrrev_b32 v1, 6, v0"); P("v_and_b32 v2, 63, v0")
        P("s_getpc_b64 s[18:19]")
        P("L_pc2:")
        P("s_lshr_b32 s4, s2, 3"); P(f"s_mul_i32 s4, s4, {128*4*o.ctn}")
        P(f"v_mul_u32_u24 v1, {128*o.ctn}, v1"); P("v_lshl_add_u32 v7, v2, 7, v1"); P("v_add_u32 v7, s4, v7")
        P("v_min_u32 v7, L_exit-L_pc2, v7")
        P(f"s_mov_b64 exec, {(1 << o.ctn) - 1}")
        P("global_load_dword v254, v7, s[18:19]", "touch")
        P("s_mov_b64 exec, -1")
    if o.xor: P(f"s_xor_b32 s2, s2, {o.xor}")
    stamp(P, o, 0)
    P("v_lshrrev_b32 v1, 6, v0")
    P("s_and_b32 s4, s2, 7")
    P("v_readfirstlane_b32 s3, v1")
    P(f"s_lshr_b32 s{s_br}, s4, 2")
    P(f"s_and_b32 s{s_hg}, s4, 3")
    P(f"s_lshr_b32 s{s_idx}, s2, 3")
    P(f"s_mul_i32 s5, s{s_br}, 40")
    P("s_add_u32 s6, s0, s5")
    P("s_addc_u32 s7, s1, 0")
    P("s_load_dwordx8 s[8:15], s[6:7], 0")
    P("s_load_dwordx2 s[16:17], s[6:7], 32")
    P("s_load_dwordx4 s[20:23], s[0:1], 80")
    P("s_load_dwordx2 s[24:25], s[0:1], 96")
    P("v_and_b32 v0, 63, v0")
    if o.ctouch == 2: code_touch(P, o)

def code_touch(P, o):
    P("s_getpc_b64 s[18:19]")
    P("L_pc2:")
    P("s_sub_u32 s18, s18, L_pc2-L_start"); P("s_subb_u32 s19, s19, 0")
    P(f"s_lshl_b32 s4, s{s_idx}, 2"); P("s_add_u32 s4, s4, s3"); P(f"s_mul_i32 s4, s4, {128*o.ctn}")
    P("v_lshl_add_u32 v7, v0, 7, s4")
    P("v_min_u32 v7, L_exit-L_start, v7")
    P(f"s_mov_b64 exec, {(1 << o.ctn) - 1}")
    P("global_load_dword v254, v7, s[18:19]", "touch")
    P("s_mov_b64 exec, -1")

def build_srds(P):
    P.wait(lgkm=0)
    def one(n, lo, size):
        P(f"s_mov_b32 s{n}, s{lo}"); P(f"s_and_b32 s{n+1}, s{lo+1}, 0xffff")
        P(f"s_mov_b32 s{n+2}, {size}"); P(f"s_mov_b32 s{n+3}, 0x20000")
    one(sWQ, 14, 1024*4096*2); one(sX, 8, 16*48*1024*2)

def build_srds2(P):
    def one(n, lo, size):
        P(f"s_mov_b32 s{n}, s{lo}"); P(f"s_and_b32 s{n+1}, s{lo+1}, 0xffff")
        P(f"s_mov_b32 s{n+2}, {size}"); P(f"s_mov_b32 s{n+3}, 0x20000")
    one(sK, 10, 16*32*48*128*2); one(sV, 12, 16*32*48*128*2)
    one(sWO, 16, 4096*1024*2); one(sOUT, 20, 16*48*2048*2)
    one(sDBG, 22, 256); one(sWS, 24, 268435456)

def p1_scalar(P, o):
    P(f"s_and_b32 s{s_bg}, s{s_idx}, 3")
    P(f"s_lshr_b32 s4, s{s_idx}, 2")
    if o.hmap == 0:
        P(f"s_lshl_b32 s{s_h}, s{s_hg}, 3")
        P(f"s_add_u32 s{s_h}, s{s_h}, s4")
    else:
        P(f"s_lshl_b32 s{s_h}, s4, 2")
        P(f"s_add_u32 s{s_h}, s{s_h}, s{s_hg}")
    P(f"s_lshl_b32 s{s_b}, s{s_bg}, 2")
    P(f"s_add_u32 s{s_b}, s{s_b}, s3")
    P(f"s_mul_i32 s{s_xoff}, s{s_b}, {48*2048}")
    P(f"s_lshl_b32 s4, s3, 17")
    P(f"s_lshl_b32 s{s_woff}, s{s_h}, 8")
    P(f"s_add_u32 s{s_woff}, s{s_woff}, s4")
    P(f"s_mul_i32 s{s_mx}, s3, 6144"); P(f"s_add_u32 s{s_mx}, s{s_mx}, {LDS_X}")
    P(f"s_lshl_b32 s{s_mw}, s3, 12")
    if o.perm is not None:
        P(f"s_mul_i32 s4, s{s_bg}, {o.phi[0]}"); P(f"s_lshr_b32 s5, s{s_idx}, 2"); P(f"s_mul_i32 s5, s5, {o.phi[1]}")
        P("s_add_u32 s4, s4, s5"); P("s_and_b32 s4, s4, 3")
        if o.perm_ws:
            P.wait(lgkm=0)
            P("s_lshl_b32 s4, s4, 3"); P(f"s_add_u32 s4, s4, {20 << 20}")
            P("s_add_u32 s6, s24, s4"); P("s_addc_u32 s7, s25, 0")
            P("s_load_dwordx2 s[18:19], s[6:7], 0")
            P.wait(lgkm=0)
            P(f"s_mov_b32 s{s_st}, s18"); P(f"s_mov_b32 s{s_pm2}, s19")
        else:
            words = [sum(k << (4*i) for i, k in enumerate(p)) for p in o.perm]
            P(f"s_mov_b32 s{s_st}, {words[0] & 0xffffffff}"); P(f"s_mov_b32 s{s_pm2}, {words[0] >> 32}")
            for ph in (1, 2, 3):
                P(f"s_cmp_eq_u32 s4, {ph}")
                P(f"s_cselect_b32 s{s_st}, {words[ph] & 0xffffffff}, s{s_st}"); P(f"s_cselect_b32 s{s_pm2}, {words[ph] >> 32}, s{s_pm2}")
        P(f"s_mov_b32 s{s_xb}, s{s_xoff}"); P(f"s_mov_b32 s{s_wb}, s{s_woff}")
        P(f"s_and_b32 s4, s{s_st}, 15")
        P(f"s_lshl_b32 s5, s4, 7"); P(f"s_add_u32 s{s_xoff}, s{s_xb}, s5")
        P(f"s_lshl_b32 s4, s4, 19"); P(f"s_add_u32 s{s_woff}, s{s_wb}, s4")
    elif o.rot:
        P(f"s_mul_i32 s4, s{s_bg}, {o.rot_bg}"); P(f"s_lshr_b32 s5, s{s_idx}, 2"); P(f"s_mul_i32 s5, s5, {o.rot_h}")
        P(f"s_add_u32 s{s_st}, s4, s5"); P(f"s_and_b32 s{s_st}, s{s_st}, {o.rb-1}")
        P(f"s_mov_b32 s{s_xb}, s{s_xoff}"); P(f"s_mov_b32 s{s_wb}, s{s_woff}")
        P(f"s_lshl_b32 s4, s{s_st}, 7"); P(f"s_add_u32 s{s_xoff}, s{s_xb}, s4")
        P(f"s_lshl_b32 s4, s{s_st}, 19"); P(f"s_add_u32 s{s_woff}, s{s_wb}, s4")

def p1_scalar2(P, o):
    P(f"s_lshl_b32 s4, s{s_b}, 5"); P(f"s_add_u32 s4, s4, s{s_h}")
    P(f"s_mul_i32 s{s_kvoff}, s4, 12288")
    P(f"s_lshl_b32 s4, s{s_br}, 3"); P(f"s_lshr_b32 s5, s{s_b}, 1"); P("s_add_u32 s4, s4, s5")
    P(f"s_mul_i32 s4, s4, {o.oblk}"); P(f"s_mul_i32 s{s_ooff}, s{s_h}, 24576"); P(f"s_add_u32 s{s_ooff}, s{s_ooff}, s4")
    P(f"s_and_b32 s5, s{s_b}, 1"); P("s_mul_i32 s5, s5, 3072"); P(f"s_add_u32 s{s_ooff}, s{s_ooff}, s5")
    P(f"s_mov_b32 s{s_kb}, {KV_BASE[0]}")
    for w in (1, 2, 3):
        P(f"s_cmp_eq_u32 s3, {w}"); P(f"s_cselect_b32 s{s_kb}, {KV_BASE[w]}, s{s_kb}")
    P(f"s_mov_b32 s{s_cs}, {f32bits(math.log2(math.e)/math.sqrt(128.0))}")
    P(f"s_lshl_b32 s4, s{s_br}, 4"); P(f"s_lshl_b32 s5, s{s_bg}, 2"); P("s_add_u32 s4, s4, s5")
    P(f"s_lshr_b32 s5, s{s_h}, 3"); P("s_add_u32 s4, s4, s5"); P(f"s_lshl_b32 s{s_sig}, s4, 3")
    P(f"s_mov_b32 s{s_t0}, s{s_kvoff}"); P(f"s_add_u32 s{s_t0+1}, s{s_kvoff}, 4096"); P(f"s_add_u32 s{s_t0+2}, s{s_kvoff}, 8192")
    if o.p2map == 'A':
        P(f"s_and_b32 s4, s{s_hg}, 1"); P("s_lshl_b32 s4, s4, 2"); P(f"s_and_b32 s5, s{s_idx}, 3"); P(f"s_add_u32 s{s_rt}, s4, s5")
        P(f"s_lshr_b32 s4, s{s_hg}, 1"); P("s_lshl_b32 s4, s4, 3"); P(f"s_lshr_b32 s5, s{s_idx}, 2"); P(f"s_add_u32 s{s_ct}, s4, s5")
    else:
        P(f"s_and_b32 s{s_rt}, s{s_idx}, 7")
        if o.cmap == 0:
            P(f"s_lshl_b32 s4, s{s_hg}, 2"); P(f"s_lshr_b32 s5, s{s_idx}, 3"); P(f"s_add_u32 s{s_ct}, s4, s5")
        elif o.cmap == 1:
            P(f"s_lshr_b32 s5, s{s_idx}, 3"); P("s_lshl_b32 s5, s5, 2"); P(f"s_add_u32 s{s_ct}, s{s_hg}, s5")
        else:
            P(f"s_lshr_b32 s5, s{s_idx}, 3"); P(f"s_and_b32 s4, s5, 1"); P(f"s_lshr_b32 s5, s5, 1"); P("s_lshl_b32 s5, s5, 2"); P("s_add_u32 s4, s4, s5")
            P(f"s_and_b32 s5, s{s_hg}, 1"); P("s_lshl_b32 s5, s5, 1"); P("s_add_u32 s4, s4, s5")
            P(f"s_lshr_b32 s5, s{s_hg}, 1"); P("s_lshl_b32 s5, s5, 3"); P(f"s_add_u32 s{s_ct}, s4, s5")
    P.extend(p2_slots789())
    P(f"s_lshl_b32 s4, s{s_br}, 4"); P(f"s_lshr_b32 s5, s{s_rt}, 1"); P("s_lshl_b32 s5, s5, 2"); P("s_add_u32 s4, s4, s5")
    P("s_add_u32 s4, s4, s3"); P(f"s_lshl_b32 s{s_poll}, s4, 3")

def p1_vector_a(P):
    P("v_lshrrev_b32 v1, 3, v0")
    P("v_lshrrev_b32 v2, 4, v0")
    P("v_and_b32 v3, 15, v0")
    P("v_lshrrev_b32 v4, 1, v3"); P("v_and_b32 v5, 1, v0")
    for j in range(4):
        if j in (0, 2):
            P(f"v_or_b32 v6, {(j>>1)<<2}, v2"); P("v_xor_b32 v6, v6, v4"); P("v_lshlrev_b32 v6, 5, v6")
            P("v_lshl_add_u32 v6, v5, 4, v6"); P("v_lshl_add_u32 v6, v2, 13, v6")
        P(f"v_add_u32 v{V_W+j}, {4*j*8192 - j*1024}, v6")
    P("v_and_b32 v4, 7, v0")
    for par in range(2):
        P(f"v_or_b32 v6, {4*par}, v2"); P("v_xor_b32 v6, v6, v4"); P("v_lshlrev_b32 v6, 4, v6")
        P("v_lshl_add_u32 v6, v1, 11, v6")
        for i in range(par, 6, 2):
            imm = (i if i < 4 else i-4)*1024
            P(f"v_add_u32 v{V_X+i}, {8*i*2048-imm}, v6")

def p1_vector_b(P):
    P("v_lshrrev_b32 v4, 2, v3")
    P("v_and_b32 v5, 3, v0")
    P("v_and_b32 v6, 1, v2"); P("v_lshl_or_b32 v6, v6, 2, v4")
    P("v_lshl_add_u32 v7, v2, 3, v4"); P("v_lshlrev_b32 v7, 8, v7"); P("v_lshl_add_u32 v7, v5, 3, v7")
    P(f"v_lshl_add_u32 v{V_TA}, v6, 5, v7")
    for tt in range(1, 8): P(f"v_xor_b32 v{V_TA+tt}, {tt*32}, v{V_TA}")
    P("v_lshrrev_b32 v6, 1, v3"); P("v_xor_b32 v6, v6, v2"); P("v_lshlrev_b32 v6, 4, v6"); P("v_lshl_add_u32 v6, v3, 7, v6")
    P(f"v_add_u32 v{V_XR}, s{s_mx}, v6"); P(f"v_xor_b32 v{V_XR+1}, 64, v{V_XR}")
    P(f"v_lshlrev_b32 v{V_L16}, 4, v0")
    P(f"v_mul_u32_u24 v6, {K_STRIDE}, v2"); P("v_lshl_add_u32 v6, v3, 4, v6"); P(f"v_add_u32 v{V_KW}, s{s_kb}, v6")
    P(f"v_mul_u32_u24 v6, {V_STRIDE}, v2"); P("v_lshl_add_u32 v6, v3, 4, v6"); P(f"v_add_u32 v{V_VW}, s{s_kb}, v6")
    P(f"v_mul_u32_u24 v6, {K_STRIDE}, v3"); P("v_lshl_add_u32 v6, v2, 3, v6"); P(f"v_add_u32 v{V_KR}, s{s_kb}, v6")
    P("v_lshl_add_u32 v6, v2, 2, v4")
    P(f"v_mul_u32_u24 v7, {V_STRIDE}, v6"); P("v_lshl_add_u32 v7, v5, 3, v7"); P(f"v_add_u32 v{V_VR}, s{s_kb}, v7")
    P("v_lshrrev_b32 v7, 1, v6"); P("v_and_b32 v7, 3, v7")
    P("v_lshlrev_b32 v6, 7, v6"); P("v_lshl_add_u32 v6, v5, 3, v6"); P("v_lshl_add_u32 v6, v7, 5, v6")
    P(f"v_mov_b32 v{V2_TA}, v6")
    for tn in range(1, 4): P(f"v_xor_b32 v{V2_TA+tn}, {tn*32}, v{V2_TA}")
    P("v_and_b32 v6, 7, v0"); P("v_lshrrev_b32 v6, 1, v6"); P("v_xor_b32 v6, v6, v2"); P("v_lshlrev_b32 v6, 5, v6")
    P("v_and_b32 v7, 1, v0"); P("v_lshl_add_u32 v6, v7, 4, v6")
    P(f"v_lshl_add_u32 v{V2_WD}, v1, 11, v6")
    for j in range(1, 4): P(f"v_add_u32 v{V2_WD+j}, {j*(16384-1024)}, v{V2_WD}")

def dma_stage(s, o):
    slot = s % 3; L = []; tag = f"dma{s}"
    L.append(mk(f"s_add_u32 m0, s{s_mw}, {LDS_W + slot*16384}"))
    for j in range(4):
        L.append(mk(f"buffer_load_dwordx4 v{V_W+j}, {srd(sWQ)}, s{s_woff} offen offset:{j*1024} {o.nt_w} lds", tag))
    L.append(mk(f"s_add_u32 m0, s{s_mx}, {slot*24576}"))
    for i in range(4):
        L.append(mk(f"buffer_load_dwordx4 v{V_X+i}, {srd(sX)}, s{s_xoff} offen offset:{i*1024} {o.nt_x} lds", tag))
    L.append(mk(f"s_add_u32 m0, s{s_mx}, {slot*24576+4096}"))
    for i in (4, 5):
        L.append(mk(f"buffer_load_dwordx4 v{V_X+i}, {srd(sX)}, s{s_xoff} offen offset:{(i-4)*1024} {o.nt_x} lds", tag))
    if o.perm is not None:
        if s < 15:
            src = s_st if s+1 < 8 else s_pm2
            L.append(mk(f"s_bfe_u32 s4, s{src}, {hex((4 << 16) | (4*((s+1) & 7)))}"))
            L.append(mk(f"s_lshl_b32 s5, s4, 7"))
            L.append(mk(f"s_add_u32 s{s_xoff}, s{s_xb}, s5"))
            L.append(mk(f"s_lshl_b32 s4, s4, 19"))
            L.append(mk(f"s_add_u32 s{s_woff}, s{s_wb}, s4"))
    elif not o.rot:
        L.append(mk(f"s_add_u32 s{s_woff}, s{s_woff}, {64*8192}"))
        L.append(mk(f"s_add_u32 s{s_xoff}, s{s_xoff}, 128"))
    else:
        blk = ((s+1)//o.rb)*o.rb
        L.append(mk(f"s_add_u32 s{s_st}, s{s_st}, 1"))
        L.append(mk(f"s_and_b32 s{s_st}, s{s_st}, {o.rb-1}"))
        L.append(mk(f"s_or_b32 s4, s{s_st}, {blk}"))
        L.append(mk(f"s_lshl_b32 s5, s4, 7"))
        L.append(mk(f"s_add_u32 s{s_xoff}, s{s_xb}, s5"))
        L.append(mk(f"s_lshl_b32 s4, s4, 19"))
        L.append(mk(f"s_add_u32 s{s_woff}, s{s_wb}, s4"))
    return L

def frag_reads(s, ss):
    slot = s % 3; buf = (2*s+ss) & 1; L = []
    for u in range(3):
        L.append(mk(f"ds_read_b128 {ar(fb(buf,u),4)}, v{V_XR+ss} offset:{slot*24576 + u*2048}", f"fr{s}"))
    for t in range(8):
        for j in range(2):
            L.append(mk(f"ds_read_b64_tr_b16 {ar(fa(buf,t)+2*j,2)}, v{V_TA+t} offset:{slot*16384 + ss*8192 + j*1024}", f"fr{s}"))
    return L

MORDER = ['t']
def mfma_block(s, ss):
    buf = (2*s+ss) & 1; L = []
    order = [(t, u) for t in range(8) for u in range(3)] if MORDER[0] == 't' else [(t, u) for u in range(3) for t in range(8)]
    if MORDER[0] == 'z': order = [(t if u % 2 == 0 else 7-t, u) for u in range(3) for t in range(8)]
    if MORDER[0] == 's': order = [(t, u if t % 2 == 0 else 2-u) for t in range(8) for u in range(3)]
    for (t, u) in order:
        if True:
            c = "0" if (s == 0 and ss == 0) else vr(acc(t,u),4)
            L.append(mk(f"v_mfma_f32_16x16x32_bf16 {vr(acc(t,u),4)}, {ar(fa(buf,t),4)}, {ar(fb(buf,u),4)}, {c}"))
    return L

def kv_loads(o):
    L = []
    for i in range(24):
        isv = i >= 12; ii = i % 12
        L.append(mk(f"buffer_load_dwordx4 {ar(A_KV+4*i,4)}, v{V_L16}, {srd(sV if isv else sK)}, s{s_t0 + (ii//4)} offen offset:{(ii%4)*1024} {o.nt_kv}", "kv"))
    return L

def split_dma(L):
    n = 0
    for k, i in enumerate(L):
        if i.kind == 'dma':
            n += 1
            if n == 5: return L[:k+1], L[k+1:]
    return L, []

def anchor(L, gaps):
    T = []; j = 0
    for i in L:
        if i.kind in ('dma', 'vload', 'vstore'):
            T.append((gaps[min(j, len(gaps)-1)], i)); j += 1
        else:
            g = gaps[j]-1 if j < len(gaps) else gaps[-1]
            T.append((max(g, 0), i))
    return T

def fill_gaps(mf, timed, per_gap=2):
    out = []; pend = list(timed)
    for k, m in enumerate(mf):
        out.append(m)
        n = 0; j = 0
        while n < per_gap and j < len(pend):
            if pend[j][0] <= k:
                out.append(pend.pop(j)[1]); n += 1
            else: j += 1
    out.extend(x[1] for x in pend)
    return out

s_ws = 14
def p2_tables(o):
    L = []; A = lambda x: L.append(mk(x))
    A(f"s_lshl_b32 s12, s{s_br}, 3"); A(f"s_add_u32 s12, s12, s{s_rt}"); A(f"s_mul_i32 s12, s12, {o.oblk}")
    A(f"s_mul_i32 s13, s3, {8*24576}"); A(f"s_add_u32 s{s_oo}, s12, s13")
    A(f"s_lshl_b32 s{s_wo2}, s3, 21"); A(f"s_lshl_b32 s12, s{s_ct}, 7"); A(f"s_add_u32 s{s_wo2}, s{s_wo2}, s12")
    if o.p2map == 'A':
        A(f"s_and_b32 s12, s{s_idx}, 3"); A(f"s_lshr_b32 s13, s{s_idx}, 2")
    else:
        A(f"s_and_b32 s12, s{s_idx}, 7"); A(f"s_lshr_b32 s13, s{s_idx}, 3")
    A(f"s_mul_i32 s12, s12, {o.p2rot_r}"); A(f"s_mul_i32 s13, s13, {o.p2rot_c}"); A(f"s_add_u32 s12, s12, s13")
    A(f"s_and_b32 s{s_ws}, s12, {o.R-1}")
    A("s_lshl_b32 s12, s3, 12")
    for k, base in enumerate((122880 + 5*4096, 16384, 73728, 32768, 98304, 0, 49152)):
        A(f"s_add_u32 s{S_SLOT[k]}, s12, {base}")
    return L
def p2_slots789():
    tab = [(90112, 94208, 114688), (118784, 65536, 69632), (122880, 126976, 131072), (135168, 139264, 159744)]
    L = []; A = lambda x: L.append(mk(x))
    for k in range(3): A(f"s_mov_b32 s{S_SLOT[7+k]}, {tab[0][k]}")
    for w in (1, 2, 3):
        A(f"s_cmp_eq_u32 s3, {w}")
        for k in range(3): A(f"s_cselect_b32 s{S_SLOT[7+k]}, {tab[w][k]}, s{S_SLOT[7+k]}")
    return L
S_WT = 20
def wtable_words(o):
    out = []
    for seq in o.wperm:
        w = [0]*8
        for l, k in enumerate(seq): w[l//6] |= k << (5*(l % 6))
        out.append(w)
    return out
def load_wtable(P, o):
    if o.wperm is None: return
    n = len(o.wperm)
    if o.w2d:
        if o.p2map == 'A': P(f"s_and_b32 s4, s{s_idx}, 3"); P(f"s_lshr_b32 s5, s{s_idx}, 2")
        else: P(f"s_and_b32 s4, s{s_idx}, 7"); P(f"s_lshr_b32 s5, s{s_idx}, 3")
        if o.w2d == 9: P(f"s_and_b32 s4, s5, {n-1}")
        else: P(f"s_mul_i32 s5, s5, {o.w2d}"); P("s_add_u32 s4, s4, s5"); P(f"s_and_b32 s4, s4, {n-1}")
    else: P(f"s_and_b32 s4, s{s_idx}, {n-1}")
    P("s_lshl_b32 s4, s4, 5")
    P("s_getpc_b64 s[6:7]")
    P("L_pc:")
    P("s_add_u32 s6, s6, L_wtab-L_pc"); P("s_addc_u32 s7, s7, 0")
    P("s_add_u32 s6, s6, s4"); P("s_addc_u32 s7, s7, 0")
    P("s_load_dwordx4 s[20:23], s[6:7], 0"); P("s_load_dwordx2 s[24:25], s[6:7], 16")
def actual_step(l, o, dst):
    if o.wperm is not None:
        return [mk(f"s_bfe_u32 {dst}, s{S_WT + l//6}, {hex((5 << 16) | (5*(l % 6)))}")]
    R = o.R
    L = [mk(f"s_add_u32 {dst}, s{s_ws}, {l & (R-1)}"), mk(f"s_and_b32 {dst}, {dst}, {R-1}")]
    blk = (l // R)*R
    if blk: L.append(mk(f"s_or_b32 {dst}, {dst}, {blk}"))
    return L

def kv_stage(c):
    if c < 3:
        kt = c
        w = [mk(f"ds_write_b128 v{V_KW}, {ar(A_KV+16*c+4*i,4)} offset:{i*4*K_STRIDE}") for i in range(4)]
        r = [mk(f"ds_read_b64 {ar(kf(kt,p)+2*j,2)}, v{V_KR} offset:{64*p + 32*j}") for p in range(4) for j in range(2)]
    else:
        kt = c - 3
        w = [mk(f"ds_write_b128 v{V_VW}, {ar(A_KV+16*c+4*i,4)} offset:{i*4*V_STRIDE}") for i in range(4)]
        r = [mk(f"ds_read_b64_tr_b16 {ar(vf(t)+2*kt,2)}, v{V_VR} offset:{32*t}") for t in range(8)]
    return w, r

def p1_main(P, o):
    kv = kv_loads(o)
    kvq = {}
    if o.kvmode == 'spread': kvq = {c: 2*c+1 for c in range(6)}
    else:
        for q, (a0, a1) in o.kvmode.items():
            for c in range(a0//4, (a1+3)//4): kvq[c] = q
    dsx = {}
    last = -1
    for c in range(6 if not o.vblocks else 3):
        w, r = kv_stage(c)
        nb = max(2*(kvq[c]+2)+1, last+2)
        dsx.setdefault(nb, []).extend(w); dsx.setdefault(nb+1, []).extend(r); last = nb
    assert last+1 <= 31, last
    tb = p2_tables(o)
    sal = {24: tb[:len(tb)//2], 25: tb[len(tb)//2:]}
    early = {27: [0], 28: [1], 29: [2], 30: [3], 31: [4]} if o.n_early == 5 else ({27: [0], 28: [1, 2]} if o.n_early == 3 else {})
    if o.n_early == 5: early = {27: [0, 1], 28: [2], 29: [3], 30: [4]}
    plan = {}
    delayed = getattr(o, 'delayed', ())
    for st in range(2 if o.pro == 1 else 3, 16):
        h1, h2 = split_dma(dma_stage(st, o))
        if st == 2: b1, b2 = (0, 0) if st not in delayed else (0, 1)
        else: b1, b2 = (2*st-5, 2*st-4) if st not in delayed else (2*st-4, 2*st-3)
        assert b2 <= 2*st-2
        plan.setdefault(b1, []).append((st, 0, h1)); plan.setdefault(b2, []).append((st, 1, h2))
    P.wait(vm="dma0"); P("s_barrier")
    stamp(P, o, 1)
    P.extend(frag_reads(0, 0))
    for s in range(16):
        for ss in range(2):
            n = 2*s + ss
            vm = []
            for (st, hf, L) in sorted(plan.get(n, []), key=lambda x: (x[0], x[1])): vm += L
            if ss == 0:
                P.wait(lgkm=0)
                f = frag_reads(s, 1)
                if o.kvmode == 'spread':
                    if s < 12: vm += kv[2*s:2*s+2]
                elif s in o.kvmode: a0, a1 = o.kvmode[s]; vm += kv[a0:a1]
            else:
                if s + 1 <= 15:
                    P.wait(vm=f"dma{s+1}", lgkm=0); P("s_barrier")
                    if o.stage_stamps and (s+1) % 2 == 0: stamp(P, o, (s+1)//2 + 1, True)
                else:
                    P.wait(lgkm=0)
                f = frag_reads(s+1, 0) if s+1 <= 15 else []
            if o.vblocks and n in o.vblocks: a0, a1 = o.vblocks[n]; vm = vm + kv[a0:a1]
            for l in early.get(n, []): vm = vm + wo_dma(l, o)
            nv = sum(1 for i in vm if i.kind in ('dma', 'vload'))
            gaps = [2 + (k*21)//max(nv,1) for k in range(nv)] if nv else [0]
            T = anchor(vm, gaps) + [((k*2)//3, i) for k, i in enumerate(f)] + [(11+k//2, i) for k, i in enumerate(dsx.get(n, []))]
            T += [(12 + k//2, i) for k, i in enumerate(sal.get(n, []))]
            if n == 31 and o.merge31:
                assert not T
                o.carry = mfma_block(s, ss)
            else:
                P.extend(fill_gaps(mfma_block(s, ss), T))
    if not o.merge31: P.wait(lgkm=0)
    if o.nob16:
        assert o.n_attn <= o.n_early and o.n_pre <= o.n_early and o.tr_attn == 0
    else:
        assert not o.merge31
        P("s_barrier")
    stamp(P, o, 9 if o.stage_stamps else 2, True)

def wo_dma(l, o):
    L = [mk(f"s_mov_b32 m0, s{S_SLOT[l % NSLOT]}")]
    L += actual_step(l, o, f"s{s_wcur}")
    L += [mk(f"s_lshl_b32 s{s_wcur}, s{s_wcur}, 16"), mk(f"s_add_u32 s{s_wcur}, s{s_wcur}, s{s_wo2}")]
    for j in range(4):
        L.append(mk(f"buffer_load_dwordx4 v{V2_WD+j}, {srd(sWO)}, s{s_wcur} offen offset:{j*1024} {o.nt_wo} lds", f"wo{l}"))
    return L
V2_TT = 4
def wo_tr(l):
    L = []
    for tn in range(4):
        L.append(mk(f"v_add_u32 v{V2_TT+tn}, s{S_SLOT[l % NSLOT]}, v{V2_TA+tn}"))
    for tn in range(4):
        for j in range(2):
            L.append(mk(f"ds_read_b64_tr_b16 {rq(woq(l, tn), 2*j, 2)}, v{V2_TT+tn} offset:{j*2048}", f"tr{l}"))
    return L

def softmax_chain(u):
    L = []
    S = [sa(kt, u) + r for kt in range(3) for r in range(4)]
    m = V_M + 4*u; t = m + 1; t2 = m + 2; t3 = m + 3
    A = lambda x: L.append(mk(x))
    A(f"v_max3_f32 v{m}, v{S[0]}, v{S[1]}, v{S[2]}")
    A(f"v_max3_f32 v{t}, v{S[3]}, v{S[4]}, v{S[5]}")
    A(f"v_max3_f32 v{t2}, v{S[6]}, v{S[7]}, v{S[8]}")
    A(f"v_max3_f32 v{t3}, v{S[9]}, v{S[10]}, v{S[11]}")
    A(f"v_max3_f32 v{m}, v{m}, v{t}, v{t2}")
    A(f"v_max_f32 v{m}, v{m}, v{t3}")
    for sw in ("v_permlane16_swap_b32", "v_permlane32_swap_b32"):
        A(f"v_mov_b32 v{t}, v{m}")
        A(f"{sw} v{m}, v{t}")
        A(f"v_max_f32 v{m}, v{m}, v{t}")
    A(f"v_mul_f32 v{m}, s{s_cs}, v{m}")
    for x in S: A(f"v_fma_f32 v{x}, v{x}, s{s_cs}, -v{m}")
    for x in S: A(f"v_exp_f32 v{x}, v{x}")
    A(f"v_add_f32 v{t}, v{S[0]}, v{S[1]}")
    A(f"v_add_f32 v{t2}, v{S[2]}, v{S[3]}")
    A(f"v_add_f32 v{t3}, v{S[4]}, v{S[5]}")
    A(f"v_add_f32 v{m}, v{S[6]}, v{S[7]}")
    A(f"v_add_f32 v{t}, v{t}, v{S[8]}")
    A(f"v_add_f32 v{t2}, v{t2}, v{S[9]}")
    A(f"v_add_f32 v{t3}, v{t3}, v{S[10]}")
    A(f"v_add_f32 v{m}, v{m}, v{S[11]}")
    A(f"v_add_f32 v{t}, v{t}, v{t2}")
    A(f"v_add_f32 v{m}, v{m}, v{t3}")
    A(f"v_add_f32 v{m}, v{m}, v{t}")
    for sw in ("v_permlane16_swap_b32", "v_permlane32_swap_b32"):
        A(f"v_mov_b32 v{t}, v{m}")
        A(f"{sw} v{m}, v{t}")
        A(f"v_add_f32 v{m}, v{m}, v{t}")
    A(f"v_rcp_f32 v{m}, v{m}")
    for x in S: A(f"v_mul_f32 v{x}, v{x}, v{m}")
    for k in range(6):
        A(f"v_cvt_pk_bf16_f32 v{pb(u)+k}, v{S[2*k]}, v{S[2*k+1]}")
    return L

def attention(P, o):
    L = list(getattr(o, 'carry', [])) if o.merge31 else []
    A = lambda x, tag=None: L.append(mk(x, tag))
    for p in range(4): A(f"s_add_u32 s{s_t0+p}, s{s_ooff}, {p*6144}")
    for u in range(3):
        for p in range(4):
            for hf in range(2):
                a0 = acc(2*p+hf, u)
                A(f"v_cvt_pk_bf16_f32 v{qb(u,p)+2*hf}, v{a0}, v{a0+1}")
                A(f"v_cvt_pk_bf16_f32 v{qb(u,p)+2*hf+1}, v{a0+2}, v{a0+3}")
    for u in range(3):
        for p in range(4):
            for kt in range(3):
                c = "0" if p == 0 else vr(sa(kt,u),4)
                A(f"v_mfma_f32_16x16x32_bf16 {vr(sa(kt,u),4)}, {ar(kf(kt,p),4)}, {vr(qb(u,p),4)}, {c}")
    for u in range(3): L.extend(softmax_chain(u))
    rel = {}; edges = []
    if o.vblocks:
        assert o.n_attn <= 7 and o.n_pre <= 7 and o.tr_attn == 0
        prev = None
        for c in (3, 4, 5):
            w, r = kv_stage(c)
            for i in w:
                rel[len(L)] = o.vrel + (c-3)*o.vstep; L.append(i)
                if prev:
                    for j in prev: edges.append((j, i, 0))
            for i in r:
                L.append(i)
                for j in w: edges.append((j, i, 20))
            prev = r
    for u in range(3):
        for t in range(8):
            A(f"v_mfma_f32_16x16x32_bf16 {vr(acc(t,u),4)}, {ar(vf(t),4)}, {vr(pb(u),4)}, 0")
        for t in range(8):
            A(f"v_mfma_f32_16x16x16_bf16 {vr(acc(t,u),4)}, {ar(vf(t)+4,2)}, {vr(pb(u)+4,2)}, {vr(acc(t,u),4)}")
    for u in range(3):
        for p in range(4):
            for hf in range(2):
                a0 = acc(2*p+hf, u)
                A(f"v_cvt_pk_bf16_f32 v{qb(u,p)+2*hf}, v{a0}, v{a0+1}")
                A(f"v_cvt_pk_bf16_f32 v{qb(u,p)+2*hf+1}, v{a0+2}, v{a0+3}")
            A(f"buffer_store_dwordx4 {vr(qb(u,p),4)}, v{V_L16}, {srd(sWS)}, s{s_t0+p} offen offset:{u*1024} {o.o_sc}", "ost")
    items = []
    ne = o.n_early
    groups = [('d', l) for l in range(ne, o.n_attn)]
    seq = []
    t_list = list(range(o.tr_attn))
    while groups or t_list:
        if groups: seq.append(groups.pop(0))
        if t_list: seq.append(('t', t_list.pop(0)))
    nslots = len(seq); prev_tr = None
    for k, (kind, l) in enumerate(seq):
        t0 = (k*o.attn_span)//max(nslots, 1)
        if kind == 'd':
            D = wo_dma(l, o); nd = 0
            for i in D:
                rel[len(L)] = t0 + (nd*o.attn_span)//(4*max(nslots,1)) ; L.append(i)
                if i.kind == 'dma': nd += 1
        else:
            wv = mkwait(vm=f"wo{l}", soft=True); rel[len(L)] = t0; L.append(wv)
            T = wo_tr(l)
            for i in T:
                rel[len(L)] = t0; L.append(i)
                if i.kind == 'dsread': edges.append((wv, i, 0))
            if prev_tr is not None:
                for i in T[:4]:
                    for j in prev_tr: edges.append((j, i, 0))
            prev_tr = [i for i in T if i.kind == 'dsread']
            wl = mkwait(lgkm=f"tr{l}", soft=True); rel[len(L)] = t0 + 160; L.append(wl)
            for i in prev_tr: edges.append((i, wl, 100))
            D = wo_dma(l+10, o)
            for i in D:
                rel[len(L)] = t0 + 160; L.append(i)
                if i.kind == 'dma': edges.append((wl, i, 0))
    def sink(i):
        if i.kind == 'vstore' and o.stag:
            m = re.search(r'offset:(\d+)', i.text); u = int(m.group(1))//1024
            return (2-u)*o.stag
        return 0
    order = list_schedule(L, release=rel, verbose=o.verbose, edges=edges, sink_lat=sink, mfma_first=o.mfma_first)
    P.extend(order)
    stamp(P, o, 3)

def gap(P, o):
    issued = set(range(max(o.n_early, o.n_attn))) | {l+10 for l in range(o.tr_attn)}
    def dma(l):
        if l not in issued and l < o.nreg + 10:
            P.extend(wo_dma(l, o)); issued.add(l)
    for l in range(o.n_pre): dma(l)
    assert o.tr_pre <= max(o.n_early, o.n_attn) and not (o.tr_pre and o.tr_attn)
    for l in range(o.tr_pre):
        P.wait(vm=f"wo{l}")
        P.extend(wo_tr(l))
    P.wait(vm=0 if o.drain else "ost")
    stamp(P, o, 4)
    if o.tr_pre: P.wait(lgkm=0)
    P("s_barrier").note = 'publish'
    P("s_cmp_lg_u32 s3, 0")
    P("s_cbranch_scc1 L_nosig")
    P("v_mov_b32 v1, 1"); P("v_mov_b32 v2, 0")
    P("s_mov_b64 exec, 1")
    P(f"buffer_atomic_add v1, v2, {srd(sDBG)}, s{s_sig} offen sc1").note = 'slowpath'
    P("s_mov_b64 exec, -1")
    P("L_nosig:")
    P("v_mov_b32 v2, 0")
    for l in range(10): dma(l)
    for l in range(o.tr_pre):
        P.wait(lgkm=f"tr{l}"); dma(l+10)
    def poll_load(): P(f"buffer_load_dword v1, v2, {srd(sDBG)}, s{s_poll} offen sc1", "poll")
    for l in range(max(o.tr_attn, o.tr_pre), o.nreg):
        if l == o.poll_at: poll_load()
        P.wait(vm=f"wo{l}")
        P.extend(wo_tr(l))
        if l >= 1:
            P.wait(lgkm=f"tr{l-1}")
            dma(l-1+10)
    P.wait(lgkm=f"tr{o.nreg-1}"); dma(o.nreg+9)
    stamp(P, o, 5)
    if o.poll_at >= o.nreg: poll_load()
    P.wait(vm="poll")
    P("v_readfirstlane_b32 s4, v1")
    P("s_cmp_ge_u32 s4, 8")
    P("s_cbranch_scc1 L_polldone")
    P("s_mov_b32 s5, 0")
    P("L_poll:")
    P(f"buffer_load_dword v1, v2, {srd(sDBG)}, s{s_poll} offen sc1").note = 'slowpath'
    i = Inst("s_waitcnt vmcnt(0)"); i.note = 'slowpath'; P.add(i)
    P("v_readfirstlane_b32 s4, v1")
    P("s_add_u32 s5, s5, 1")
    P("s_cmp_gt_u32 s5, 0x40000")
    P("s_cbranch_scc1 L_polldone")
    P("s_cmp_lt_u32 s4, 8")
    P("s_cbranch_scc1 L_poll")
    P("L_polldone:")
    stamp(P, o, 6)

def o_load(i, f, o):
    r = V2_O + (i % o.DO)*24 + f*4
    sreg = s_t0 + (i & 1)*2 + (1 if f >= 4 else 0)
    return mk(f"buffer_load_dwordx4 {vr(r,4)}, v{V_L16}, {srd(sWS)}, s{sreg} offen offset:{(f if f < 4 else f-4)*1024} {o.o_ld}", f"o{i}")
def o_soff(i, o):
    b = s_t0 + (i & 1)*2
    L = actual_step(i, o, f"s{b}")
    L += [mk(f"s_mul_i32 s{b}, s{b}, 6144"), mk(f"s_add_u32 s{b}, s{b}, s{s_oo}"), mk(f"s_add_u32 s{b+1}, s{b}, 4096")]
    return L

def p2_main(P, o):
    DO = o.DO
    for i in range(DO):
        P.extend(o_soff(i, o))
        for f in range(6): P.add(o_load(i, f, o))
    P("v_lshrrev_b32 v1, 3, v0"); P("v_lshrrev_b32 v2, 4, v0"); P("v_and_b32 v3, 15, v0"); P("v_and_b32 v4, 7, v0")
    P(f"s_mul_i32 s4, s3, {RED_WAVE}")
    P(f"v_mul_u32_u24 v5, {RED_STRIDE}, v3"); P("v_lshl_add_u32 v5, v2, 4, v5"); P(f"v_add_u32 v{V2_RW}, s4, v5")
    P(f"s_mul_i32 s4, s3, {24*RED_STRIDE}")
    P(f"v_mul_u32_u24 v5, {RED_STRIDE}, v1"); P("v_lshl_add_u32 v5, v4, 5, v5"); P(f"v_add_u32 v{V2_RR}, s4, v5")
    P(f"v_add_u32 v{V2_RR+1}, {2*RED_WAVE}, v{V2_RR}")
    P("v_lshlrev_b32 v5, 12, v1"); P(f"v_lshl_add_u32 v{V2_OUT}, v4, 4, v5")
    P(f"s_mul_i32 s{s_outoff}, s{s_rt}, {96*4096}"); P(f"s_lshl_b32 s4, s{s_br}, 11"); P(f"s_add_u32 s{s_outoff}, s{s_outoff}, s4")
    P(f"s_lshl_b32 s4, s{s_ct}, 7"); P(f"s_add_u32 s{s_outoff}, s{s_outoff}, s4")
    P(f"s_mul_i32 s4, s3, {24*4096}"); P(f"s_add_u32 s{s_outoff}, s{s_outoff}, s4")
    for i in range(32):
        if i >= o.nreg: P.wait(lgkm=0)
        if i == 31 and o.tail2: P("s_barrier")
        mf = []
        for f in range(6):
            for tn in range(4):
                c = "0" if i == 0 else vr(acc2(tn,f),4)
                mf.append(mk(f"v_mfma_f32_16x16x32_bf16 {vr(acc2(tn,f),4)}, {rq(woq(i, tn), 0, 4)}, {vr(V2_O+(i%DO)*24+f*4,4)}, {c}"))
        if o.p2exp == 'nomfma': mf = [mk(f"v_mov_b32 v{8+k}, v{V2_O+(i%DO)*24+(k//4)*4}") for k in range(24)]
        T = []
        if i+DO < 32: T += [(0, x) for x in o_soff(i+DO, o)]
        if o.nreg <= i+1 < 32:
            T.append((1, mkwait(vm=f"wo{i+1}")))
            T += [(1, x) for x in wo_tr(i+1)]
        if i+DO < 32 and o.p2exp != 'noload': T += [(4*f+3, o_load(i+DO, f, o)) for f in range(6)]
        if o.nreg <= i < 22:
            T += [(5+2*k, x) for k, x in enumerate(wo_dma(i+10, o))]
        if i == 31 and o.tail2:
            T += [(min(4*f+tn+5, 23), mk(f"ds_write_b128 v{V2_RW}, {vr(acc2(tn,f),4)} offset:{f*16*RED_STRIDE + tn*64}")) for f in range(6) for tn in range(4) if 4*f+tn+5 <= 23]
        P.extend(fill_gaps(mf, T))
    stamp(P, o, 7)

def p2_epilogue(P, o):
    if not o.tail2: P("s_barrier")
    for f in range(6):
        for tn in range(4):
            if o.tail2 and 4*f+tn+5 <= 23: continue
            P(f"ds_write_b128 v{V2_RW}, {vr(acc2(tn,f),4)} offset:{f*16*RED_STRIDE + tn*64}")
    P.wait(lgkm=0); P("s_barrier")
    for i in range(3):
        for wv in range(4):
            for h in range(2):
                P(f"ds_read_b128 {vr(V2_R + (i*4+wv)*8 + 4*h, 4)}, v{V2_RR + (wv>>1)} offset:{(wv&1)*RED_WAVE + i*8*RED_STRIDE + 16*h}")
    for i in range(3):
        b = V2_R + i*32
        for e in range(8):
            P(f"v_add_f32 v{b+e}, v{b+e}, v{b+8+e}")
            P(f"v_add_f32 v{b+16+e}, v{b+16+e}, v{b+24+e}")
        for e in range(8): P(f"v_add_f32 v{b+e}, v{b+e}, v{b+16+e}")
        for e in range(4): P(f"v_cvt_pk_bf16_f32 v{b+e}, v{b+2*e}, v{b+2*e+1}")
        P(f"s_add_u32 s4, s{s_outoff}, {i*8*4096}")
        P(f"buffer_store_dwordx4 {vr(b,4)}, v{V2_OUT}, {srd(sOUT)}, s4 offen {o.out_sc}")
    stamp(P, o, 8)

def write_stamps(P, o, n):
    if not o.stamps: return
    P.wait(lgkm=0)
    P("v_mov_b32 v1, 0")
    for j in range(2*n): P(f"v_writelane_b32 v1, s{S_STAMP+j}, {j}")
    P("s_lshl_b32 s4, s2, 2"); P("s_add_u32 s4, s4, s3"); P("s_lshl_b32 s4, s4, 7"); P(f"s_add_u32 s4, s4, {STAMP_OFF}")
    P("v_lshlrev_b32 v2, 2, v0")
    P(f"s_mov_b64 exec, {hex((1<<(2*n))-1)}")
    P(f"buffer_store_dword v1, v2, {srd(sWS)}, s4 offen")
    P("s_mov_b64 exec, -1")

def kernel_text(name, insts):
    return f""".text
.globl {name}
.p2align 8
.type {name},@function
{name}:
{text_of(insts)}
.section .rodata,"a"
.p2align 6
.amdhsa_kernel {name}
  .amdhsa_next_free_vgpr 512
  .amdhsa_next_free_sgpr 102
  .amdhsa_accum_offset 256
  .amdhsa_group_segment_fixed_size 0
  .amdhsa_kernarg_size 104
  .amdhsa_user_sgpr_count 2
  .amdhsa_user_sgpr_kernarg_segment_ptr 1
  .amdhsa_system_sgpr_workgroup_id_x 1
.end_amdhsa_kernel
.text
"""

def gen_kernel(name, o):
    NREG[0] = o.nreg; ARCH0[0] = V2_O + 24*o.DO; MORDER[0] = o.morder
    assert ARCH0[0] + 16*(o.nreg-16) <= 256
    P = Prog()
    P("L_start:")
    prologue(P, o)
    p1_scalar(P, o)
    p1_vector_a(P)
    build_srds(P)
    if o.pro_stamps: stamp(P, o, 3, True)
    for s in range(3 if o.pro == 0 else 1):
        P.extend(dma_stage(s, o))
        if o.pro_stamps: stamp(P, o, 4+s, True)
    if o.ctouch == 1: code_touch(P, o)
    build_srds2(P)
    p1_scalar2(P, o)
    load_wtable(P, o)
    p1_vector_b(P)
    if o.pro >= 1: P.extend(dma_stage(1, o))
    if o.pro == 2: P.extend(dma_stage(2, o))
    if o.touch:
        P("v_mov_b32 v7, 0")
        P("s_lshl_b32 s4, s3, 21")
        P(f"buffer_load_dword v254, v7, {srd(sWO)}, s4 offen", "touch")
        P(f"s_mul_i32 s4, s{s_rt}, {96*4096}")
        P(f"buffer_load_dword v254, v7, {srd(sOUT)}, s4 offen", "touch")
        if o.touch >= 2:
            P(f"buffer_load_dword v254, v7, {srd(sK)}, s{s_kvoff} offen", "touch")
            P(f"buffer_load_dword v254, v7, {srd(sV)}, s{s_kvoff} offen", "touch")
        if o.touch >= 3:
            assert o.oblk == 1 << 20
            P(f"s_and_b32 s4, s{s_ooff}, 0xfff00000"); P("s_add_u32 s4, s4, 0xc0000")
            P(f"buffer_load_dword v254, v7, {srd(sWS)}, s4 offen", "touch")
            P(f"s_lshl_b32 s4, s{s_br}, 3"); P(f"s_add_u32 s4, s4, s{s_rt}"); P("s_lshl_b32 s4, s4, 20"); P("s_add_u32 s4, s4, 0xc0000")
            P(f"buffer_load_dword v254, v7, {srd(sWS)}, s4 offen", "touch")
    if o.pro_stamps: stamp(P, o, 7, True)
    if o.upto >= 1:
        if isinstance(o.kvmode, list):
            P(f"s_mul_i32 s4, s{s_bg}, {o.phi[0]}"); P(f"s_lshr_b32 s5, s{s_idx}, 2"); P(f"s_mul_i32 s5, s5, {o.phi[1]}")
            P("s_add_u32 s4, s4, s5"); P("s_and_b32 s4, s4, 3")
            modes = o.kvmode
            for ph in (1, 2, 3):
                P(f"s_cmp_eq_u32 s4, {ph}"); P(f"s_cbranch_scc1 L_var{ph}")
            for ph in range(4):
                if ph: P(f"L_var{ph}:")
                o.kvmode = modes[ph]
                o.delayed = o.delay_sets[ph] if o.delay_sets else ()
                Q = Prog(); p1_main(Q, o)
                sub = resolve_waits(Q.insts + [mkwait(vm=None, lgkm=None)])
                P.add(Inst(".variant_begin")); P.extend(Q.insts); P.add(Inst(".variant_end"))
                if ph < 3: P("s_branch L_varjoin")
            P("L_varjoin:")
            o.kvmode = modes
        else:
            p1_main(P, o)
    if o.upto >= 2: attention(P, o)
    if o.upto >= 3: gap(P, o)
    if o.upto >= 4:
        p2_main(P, o)
        p2_epilogue(P, o)
    if o.endwait or o.stamps: P.wait(vm=0)
    stamp(P, o, 9)
    write_stamps(P, o, 10)
    if o.endwait or o.stamps: P.wait(vm=0)
    P("L_exit:")
    P("s_endpgm")
    if o.wperm is not None:
        P(".p2align 6"); P("L_wtab:")
        for w in wtable_words(o): P(".long " + ", ".join(hex(x) for x in w))
    insts, nops = finalize(P)
    for ta in (False, True):
        for ts in (False, True):
            bad = verify_counters(insts, ta, ts)
            assert not bad, (name, ta, ts, bad[:5])
    txt = kernel_text(name, insts)
    txt = txt.replace(".variant_begin", "").replace(".variant_end", "")
    for lab in ("L_exit", "L_nosig", "L_polldone", "L_poll", "L_var1", "L_var2", "L_var3", "L_varjoin", "L_pc", "L_wtab", "L_pc2", "L_start"):
        txt = re.sub(r'\b' + lab + r'\b', lab + "_" + name[-24:], txt)
    return txt, len(insts), nops

def pioneer_perm(L, period=4, n=16):
    out = []
    for phi in range(period):
        left = list(range(n)); seq = []
        for t in range(n):
            k = t + L if (t % period == phi and t + L in left) else left[0]
            left.remove(k); seq.append(k)
        out.append(seq)
    return out

HEADER = """; concat_heads( MHA block , GQA block ):  out[:, :, 0:1024] = branch A, out[:, :, 1024:2048] = branch B,
"""
def final_file(o):
    t, n, _ = gen_kernel(KNAME, o)
    return HEADER + "; @launch grid=(256,1,1) block=(256,1,1) lds=163840\n" + '.amdgcn_target "amdgcn-amd-amdhsa--gfx950"\n' + t

def build(V, fn="fx"):
    from hipmini import metadata, assemble
    s = '.amdgcn_target "amdgcn-amd-amdhsa--gfx950"\n'; ks = []
    for n, o in V.items():
        t, ni, nops = gen_kernel(n, o); s += t; ks.append((n, 102, 512, 256))
    s += metadata(ks, 13)
    open(f"work/{fn}.s", "w").write(s); assemble(f"work/{fn}.s", f"work/{fn}.co"); print(" ".join(V), ni, nops)

if __name__ == "__main__":
    V = {}
    def k6(*st): return {q:(4*i,4*i+4) for i, q in enumerate(st)}
    base = dict(stamps=True, nt_kv="nt", tail2=True, stag=300, out_sc="sc1", n_early=5, n_attn=5, n_pre=5,
            perm=pioneer_perm(3), hmap=1, mfma_first=True, cmap=1, pro=1, kvmode=k6(2,4,6,8,10,12), p2map='B', R=8, p2rot_c=0, p2rot_r=1)
    for clk, nm in (("s_memrealtime", "t"), ("s_memtime", "c")):
        V[f"{nm}_full"] = Opt(**base, nreg=20, DO=2, poll_at=19, clk=clk)
        V[f"{nm}_nomfma"] = Opt(**base, nreg=20, DO=2, poll_at=19, clk=clk, p2exp='nomfma')
        V[f"{nm}_noload"] = Opt(**base, nreg=20, DO=2, poll_at=19, clk=clk, p2exp='noload')
        V[f"{nm}_D3"] = Opt(**base, nreg=18, DO=3, poll_at=17, clk=clk)
    build(V)
```

```python
from g3 import *
from mkfinal import FINAL, k6
F = FINAL
build({"d_F": Opt(**F, stamps='dual'),
       "d_sc01": Opt(**F, stamps='dual', o_sc="sc0 sc1"),
       "d_sc01l": Opt(**F, stamps='dual', o_sc="sc0 sc1", o_ld="sc0 sc1"),
       "d_kvd": Opt(**{**F, "nt_kv": ""}, stamps='dual'),
       "d_kvsc": Opt(**{**F, "nt_kv": "sc1 nt"}, stamps='dual'),
       }, "fx")
```
